```python
import torch

def _softmax(x, axis=-1):
    return torch.softmax(x, dim=axis)
def _gelu(x):
    return torch.nn.functional.gelu(x, approximate="tanh")
def _silu(x):
    return torch.nn.functional.silu(x)
def _sigmoid(x):
    return torch.sigmoid(x)
def _layernorm(x, axis=-1, eps=1e-5):
    m = x.mean(dim=axis, keepdim=True)
    v = x.var(dim=axis, keepdim=True, unbiased=False)
    return (x - m) / torch.sqrt(v + eps)
def _scatter_add(tgt, idx, src, axis=0):
    return tgt.clone().index_add_(axis, idx, src)
def _segment_sum(src, seg, n):
    out = torch.zeros((n,) + src.shape[1:], dtype=src.dtype)
    return out.index_add_(0, seg, src)
def _pad(x, pw):
    flat = tuple(v for pair in reversed(pw) for v in pair)
    return torch.nn.functional.pad(x, flat)

kernel_name = 'parallel_sum__grouped_kv_mqa__dense_activation_silu__prompt'

def setup_inputs():

    _w = (lambda a: (lambda t: t.to(torch.bfloat16) if t.is_floating_point() else t)(torch.as_tensor(a)))
    def _A_setup():
        B, S, D, H = 1, 2048, 512, 32
        Dh = D // H
        return {
            "x": _w((lambda *s: torch.randn(*s, dtype=torch.bfloat16) * 0.05)(B, S, D)),
            "wq": _w((lambda *s: torch.randn(*s, dtype=torch.bfloat16) * 0.05)(D, H * Dh)),
            "wk": _w((lambda *s: torch.randn(*s, dtype=torch.bfloat16) * 0.05)(D, Dh)),
            "wv": _w((lambda *s: torch.randn(*s, dtype=torch.bfloat16) * 0.05)(D, Dh)),
            "wo": _w((lambda *s: torch.randn(*s, dtype=torch.bfloat16) * 0.05)(H * Dh, D)),
        }
    _A_in = _A_setup()

    def _B_setup():
        B, S, D, F = 1, 2048, 512, 1376
        return {
            "x": _w((lambda *s: torch.randn(*s, dtype=torch.bfloat16) * 0.05)(B, S, D)),
            "w1": _w((lambda *s: torch.randn(*s, dtype=torch.bfloat16) * 0.8)(D, F) * (D ** -0.5)),
            "w2": _w((lambda *s: torch.randn(*s, dtype=torch.bfloat16) * 0.2)(F, D) * (F ** -0.5)),
        }
    _B_in = _B_setup()

    return {
        "A_x": _A_in["x"],
        "A_wq": _A_in["wq"],
        "A_wk": _A_in["wk"],
        "A_wv": _A_in["wv"],
        "A_wo": _A_in["wo"],
        "B_x": _B_in["x"],
        "B_w1": _B_in["w1"],
        "B_w2": _B_in["w2"],
    }

def reference(A_x, A_wq, A_wk, A_wv, A_wo, B_x, B_w1, B_w2):
    def _A_ref(x, wq, wk, wv, wo):
        B, S, D = x.shape
        H = 32
        Dh = D // H
        q = (lambda x, *d: x.permute(*d))((x @ wq).reshape(B, S, H, Dh), 0, 2, 1, 3)
        k = x @ wk
        v = x @ wv
        scores = torch.einsum("bhqd,bkd->bhqk", q, k) * (Dh ** -0.5)
        p = _softmax(scores, axis=-1)
        o = torch.einsum("bhqk,bkd->bhqd", p, v)
        return (lambda x, *d: x.permute(*d))(o, 0, 2, 1, 3).reshape(B, S, H * Dh) @ wo

    def _B_ref(x, w1, w2):
        h = torch.einsum("bsd,df->bsf", x, w1)
        h = _silu(h)
        out = torch.einsum("bsf,fd->bsd", h, w2)
        return out

    x = A_x
    xn = _layernorm(x, axis=-1)
    return x + _A_ref(xn, A_wq, A_wk, A_wv, A_wo) + _B_ref(xn, B_w1, B_w2)
```

```python
import sys, struct, argparse

NAME = "parallel_sum__grouped_kv_mqa__dense_activation_silu__prompt"
L2E = 1.4426950408889634


def f32(x):
    return "0x%08x" % struct.unpack("<I", struct.pack("<f", x))[0]


KVOFF = 0
OOFF = 0x20000
HOFF = 0x240000
HRB = 48 * 4096
STOFF = 0x900000
WSUSED = 0xA00000

LX = 0
LQR = 65536
LGR = 98304
LQF = 147456
LCNT = 155648
LDS_BYTES = 163840
C_Q1, C_Q2, C_G1, C_G1B, C_H, C_H2, C_G2, C_G2B, C_KV = 0, 8, 16, 24, 32, 36, 40, 48, 56

SPIN = 1 << 20


class Gen:
    def __init__(self, o):
        self.o = o
        self.L = []
        self.nlab = 0
        self.vm = []
        self.lg = []

    def __call__(self, s):
        for ln in s.split("\n"):
            ln = ln.strip()
            if ln:
                self.L.append(("" if ln.endswith(":") else "    ") + ln)

    def lab(self, p):
        self.nlab += 1
        return f"L_{p}_{self.nlab}"

    def vmem(self, s, tag):
        self(s)
        self.vm.append(tag)

    def lds(self, s, tag):
        self(s)
        self.lg.append(tag)

    def _n(self, q, tags):
        last = -1
        for i, t in enumerate(q):
            if t in tags:
                last = i
        return last

    def wvm(self, *tags):
        i = self._n(self.vm, tags)
        if i < 0:
            return
        n = min(len(self.vm) - 1 - i, 62)
        self(f"s_waitcnt vmcnt({n})")
        self.vm = self.vm[len(self.vm) - n:] if n else []

    def wlg(self, *tags):
        i = self._n(self.lg, tags)
        if i < 0:
            return
        n = min(len(self.lg) - 1 - i, 14)
        self(f"s_waitcnt lgkmcnt({n})")
        self.lg = self.lg[len(self.lg) - n:] if n else []

    def wvm0(self):
        self("s_waitcnt vmcnt(0)")
        self.vm = []

    def wlg0(self):
        self("s_waitcnt lgkmcnt(0)")
        self.lg = []

    def stamp(self, i):
        if self.o.prof:
            self(f"s_memrealtime s[{S_ST + 2 * i}:{S_ST + 2 * i + 1}]")

    def signal(self, vaddr, off):
        self(f"""s_mov_b64 exec, 1
        ds_add_u32 v{vaddr}, v{V_ONE} offset:{off}
        s_mov_b64 exec, -1""")
        self.lg.append("sig")

    def spin_lds(self, vaddr, off, target, sleep=1):
        l, d = self.lab("sp"), self.lab("spd")
        self(f"""s_mov_b32 s{S_SPIN}, {SPIN}
        {l}:
        ds_read_b32 v{V_T}, v{vaddr} offset:{off}
        s_waitcnt lgkmcnt(0)
        v_readfirstlane_b32 s{S_T}, v{V_T}
        s_cmp_ge_u32 s{S_T}, {target}
        s_cbranch_scc1 {d}
        s_sleep {sleep}
        s_sub_u32 s{S_SPIN}, s{S_SPIN}, 1
        s_cmp_lg_u32 s{S_SPIN}, 0
        s_cbranch_scc1 {l}
        {d}:""")
        self.lg = []


def vr(a, n):
    return f"v[{a}:{a + n - 1}]"


def sr(a, n=4):
    return f"s[{a}:{a + n - 1}]"


S_W, S_RB, S_CG, S_ROT = 26, 27, 3, 96
R_X, R_WQ, R_WK, R_WV, R_WO, R_W1, R_W2, R_OUT, R_DBG, R_WS, R_H = 28, 32, 36, 40, 44, 48, 52, 56, 60, 64, 68
S_A, S_B, S_C, S_D, S_E = 4, 5, 6, 7, 8
S_T, S_SPIN = 9, 10
S_KH, S_LO = 11, 12
S_RING, S_PRING = 13, 14
S_SOF = 15
S_MLO = 16
S_IDX = 18
S_K1, S_K2 = 19, 20
S_ST = 72

V_LANE, V_T, V_ONE, V_IDX = 0, 1, 2, 3
V_L16 = 124
V_CNT, V_CNTP = 125, 126


def mfma32(d, a, b, c=None):
    cs = vr(d, 16) if c is None else c
    return f"v_mfma_f32_32x32x16_bf16 {vr(d, 16)}, {vr(a, 4)}, {vr(b, 4)}, {cs}"


def smf(d, a, b):
    return f"v_smfmac_f32_32x32x32_bf16 {vr(d, 16)}, {vr(a, 4)}, {vr(b, 8)}, v{V_IDX}"


def srd(g, r, p, nbytes):
    g(f"""s_mov_b32 s{r}, s{p}
    s_mov_b32 s{r + 1}, s{p + 1}
    s_mov_b32 s{r + 2}, {nbytes}
    s_mov_b32 s{r + 3}, 0x00020000""")


def prologue(g):
    o = g.o
    lr = o.lr
    lc = 5 - lr
    g(f"""s_cmp_ge_u32 s2, 256
    s_cbranch_scc1 L_end
    s_load_dwordx16 s[4:19], s[0:1], 0
    s_load_dwordx4 s[20:23], s[0:1], 64
    s_load_dwordx2 s[24:25], s[0:1], 80""")
    g.stamp(0)
    g(f"""v_lshrrev_b32 v1, 6, v0
    v_and_b32 v0, 63, v0
    s_and_b32 s97, s2, 7
    v_readfirstlane_b32 s{S_W}, v1
    s_lshr_b32 s98, s2, 3
    s_and_b32 s99, s98, {(1 << lc) - 1}
    s_lshr_b32 s{S_ROT}, s98, {lc}
    s_and_b32 s100, s97, {(8 >> lc) - 1}
    s_lshl_b32 s100, s100, {lc}
    s_add_u32 s{S_CG}, s99, s100
    s_lshr_b32 s97, s97, {3 - lc}
    s_lshl_b32 s{S_RB}, s97, {lr}
    s_add_u32 s{S_RB}, s{S_RB}, s{S_ROT}
    s_and_b32 s{S_ROT}, s{S_ROT}, {3 if o.rot else 0}
    s_lshl_b32 s99, s99, {3 - lc}
    s_and_b32 s99, s99, {7 if o.rot else 0}
    s_add_u32 s99, s99, s{S_W}
    s_and_b32 s99, s99, 7
    v_lshrrev_b32 v4, 3, v0
    v_and_b32 v5, 7, v0
    v_lshlrev_b32 v6, 10, v4
    v_lshl_add_u32 v6, v5, 4, v6
    s_lshl_b32 s97, s{S_RB}, 16
    s_lshl_b32 s98, s99, 13
    s_add_u32 s97, s97, s98
    s_waitcnt lgkmcnt(0)""")
    srd(g, R_X, 4, 2048 * 1024)
    for j in range(8):
        g.vmem(f"buffer_load_dwordx4 {vr(16 + 4 * j, 4)}, v6, {sr(R_X)}, s97 offen offset:{128 * j}", f"x{j}")
    srd(g, R_WQ, 6, 512 * 1024)
    srd(g, R_WK, 8, 512 * 32)
    srd(g, R_WV, 10, 512 * 32)
    srd(g, R_WO, 12, 512 * 1024)
    srd(g, R_W1, 16, 512 * 2752)
    srd(g, R_W2, 18, 1376 * 1024)
    srd(g, R_OUT, 20, 2048 * 1024)
    srd(g, R_DBG, 22, 256)
    srd(g, R_WS, 24, WSUSED)
    g(f"""s_mul_i32 s98, s{S_RB}, {HRB}
    s_add_u32 s98, s98, {HOFF}
    s_add_u32 s{R_H}, s24, s98
    s_addc_u32 s{R_H + 1}, s25, 0
    s_mov_b32 s{R_H + 2}, {43 * 4096}
    s_mov_b32 s{R_H + 3}, 0x00020000
    s_and_b32 s{S_IDX}, s{S_W}, 3
    s_and_b32 s{S_LO}, s{S_W}, 1
    s_lshr_b32 s{S_KH}, s{S_IDX}, 1
    s_mov_b32 s{S_MLO}, 0x0000ffff
    s_mov_b32 s{S_MLO + 1}, 0x0000ffff
    v_lshlrev_b32 v{V_L16}, 4, v0
    v_mov_b32 v{V_ONE}, 1
    v_mov_b32 v{V_IDX}, 0xdddddddd
    v_mov_b32 v{V_CNT}, {LCNT}""")
    g(f"""s_and_b32 s97, s99, 3
    s_lshl_b32 s97, s97, 3
    s_lshr_b32 s98, s99, 2
    s_lshl_b32 s98, s98, 15
    v_add_u32 v7, s97, v4
    v_xor_b32 v7, v7, v5
    v_lshlrev_b32 v7, 4, v7
    v_lshl_add_u32 v7, v5, 9, v7
    v_add_u32 v7, s98, v7""")


def layernorm(g):
    g(f"""s_mov_b32 s{S_K1}, 0x3f803f80
    v_mov_b32 v8, 0
    v_mov_b32 v9, 0
    v_mov_b32 v10, 0
    v_mov_b32 v11, 0""")
    for j in range(8):
        g.wvm(f"x{j}")
        for i in range(4):
            r = 16 + 4 * j + i
            g(f"v_dot2c_f32_bf16 v{8 + (i & 1)}, s{S_K1}, v{r}")
            g(f"v_dot2c_f32_bf16 v{10 + (i & 1)}, v{r}, v{r}")
    g.stamp(1)
    dpp = "row_mask:0xf bank_mask:0xf"
    g(f"""s_nop 2
    v_add_f32 v8, v8, v9
    v_add_f32 v10, v10, v11
    s_nop 0
    v_add_f32_dpp v8, v8, v8 quad_perm:[1,0,3,2] {dpp}
    v_add_f32_dpp v10, v10, v10 quad_perm:[1,0,3,2] {dpp}
    s_nop 0
    v_add_f32_dpp v8, v8, v8 quad_perm:[2,3,0,1] {dpp}
    v_add_f32_dpp v10, v10, v10 quad_perm:[2,3,0,1] {dpp}
    s_nop 0
    v_add_f32_dpp v8, v8, v8 row_half_mirror {dpp}
    v_add_f32_dpp v10, v10, v10 row_half_mirror {dpp}
    v_mul_f32 v8, {f32(1 / 512)}, v8
    v_mul_f32 v10, {f32(1 / 512)}, v10
    v_fma_f32 v10, -v8, v8, v10
    v_max_f32 v10, 0, v10
    v_cvt_pk_bf16_f32 v8, v8, v10
    v_and_b32 v10, 0xffff0000, v8
    v_lshlrev_b32 v8, 16, v8
    v_add_f32 v10, {f32(1e-5)}, v10
    v_cvt_pk_bf16_f32 v10, v10, v10
    v_and_b32 v10, 0xffff0000, v10
    v_sqrt_f32 v10, v10
    s_nop 0
    v_cvt_pk_bf16_f32 v10, v10, v10
    v_and_b32 v10, 0xffff0000, v10
    v_rcp_f32 v10, v10
    s_nop 0
    v_mul_f32 v10, {f32(-L2E)}, v10
    v_cvt_pk_bf16_f32 v10, v10, v10
    v_and_b32 v11, 0xffff0000, v10
    v_lshrrev_b32 v10, 16, v10
    v_mul_f32 v8, v8, v11
    v_sub_f32 v8, 0, v8""")
    for j in range(8):
        t = 48 + 8 * (j & 1)
        for i in range(4):
            r = 16 + 4 * j + i
            g(f"v_dot2_f32_bf16 v{t + 2 * i}, v{r}, v10, v8")
            g(f"v_dot2_f32_bf16 v{t + 2 * i + 1}, v{r}, v11, v8")
        if j > 0:
            p = 48 + 8 * ((j - 1) & 1)
            for i in range(4):
                g(f"v_cvt_pk_bf16_f32 v{16 + 4 * (j - 1) + i}, v{p + 2 * i}, v{p + 2 * i + 1}")
            g.lds(f"ds_write_b128 v7, {vr(16 + 4 * (j - 1), 4)} offset:{4096 * (j - 1)}", "xw")
    for i in range(4):
        g(f"v_cvt_pk_bf16_f32 v{44 + i}, v{56 + 2 * i}, v{57 + 2 * i}")
    g.lds(f"ds_write_b128 v7, {vr(44, 4)} offset:{4096 * 7}", "xw")


def xfrag_addrs(g, base):
    g(f"""v_and_b32 v4, 31, v0
    v_lshrrev_b32 v5, 5, v0
    s_lshl_b32 s{S_A}, s{S_KH}, 14
    s_lshl_b32 s{S_B}, s{S_ROT}, 12
    s_add_u32 s{S_A}, s{S_A}, s{S_B}
    s_lshl_b32 s{S_B}, s{S_KH}, 15
    s_add_u32 s{S_A}, s{S_A}, s{S_B}""")
    for i in range(4):
        g(f"""v_or_b32 v6, {2 * i}, v5
        v_xor_b32 v6, v6, v4
        v_lshlrev_b32 v6, 4, v6
        v_lshl_add_u32 v6, v5, 9, v6
        v_add_u32 v{base + i}, s{S_A}, v6
        v_xor_b32 v{base + 4 + i}, 0x8000, v{base + i}""")


def xfrag_next(g, base, q):
    m = (q ^ (q + 1)) << 12
    for i in range(8):
        g(f"v_xor_b32 v{base + i}, {m}, v{base + i}")


def step_soff(g, s, mul, base):
    g(f"""s_xor_b32 s{S_SOF}, s{S_ROT}, {s >> 2}
    s_lshl_b32 s{S_SOF}, s{S_SOF}, 2
    s_add_u32 s{S_SOF}, s{S_SOF}, {s & 3}
    s_mul_i32 s{S_SOF}, s{S_SOF}, {mul}
    s_add_u32 s{S_SOF}, s{S_SOF}, s{base}""")


def tr_lane(g):
    g("""v_bfe_u32 v4, v0, 2, 2
    v_lshrrev_b32 v5, 5, v0
    v_and_b32 v6, 3, v0
    v_lshlrev_b32 v6, 3, v6
    v_bfe_u32 v8, v0, 4, 1
    v_lshl_add_u32 v6, v8, 5, v6""")


def a_wave(g):
    o = g.o
    VQD, VQT, VXA = 116, 117, 104
    S_QB = S_C
    g(f"""s_lshl_b32 s{S_RING}, s{S_IDX}, 13
    s_add_u32 s{S_RING}, s{S_RING}, {LQR}
    s_xor_b32 s{S_PRING}, s{S_RING}, 0x4000
    v_lshrrev_b32 v8, 2, v0
    v_and_b32 v9, 3, v0
    v_lshlrev_b32 v{VQD}, 10, v8
    v_lshl_add_u32 v{VQD}, v9, 4, v{VQD}
    s_lshl_b32 s{S_QB}, s{S_KH}, 18
    s_lshl_b32 s{S_A}, s{S_CG}, 7
    s_add_u32 s{S_QB}, s{S_QB}, s{S_A}
    s_lshl_b32 s{S_A}, s{S_LO}, 6
    s_add_u32 s{S_QB}, s{S_QB}, s{S_A}""")

    def wq_dma(s):
        step_soff(g, s, 16384, S_QB)
        g(f"s_add_u32 m0, s{S_RING}, {1024 * (s & 7)}")
        g("s_nop 0")
        g.vmem(f"buffer_load_dwordx4 v{VQD}, {sr(R_WQ)}, s{S_SOF} offen lds", f"q{s}")

    lkv, lj = g.lab("akv"), g.lab("aj")
    g(f"s_cmp_eq_u32 s{S_CG}, 7\ns_cbranch_scc1 {lkv}")
    vm0 = list(g.vm)
    for s in range(8):
        wq_dma(s)
    g(f"s_branch {lj}\n{lkv}:")
    g(f"s_lshl_b32 s{S_A}, s{S_IDX}, 12\ns_add_u32 s{S_B}, s{S_A}, {LGR}")
    for R, lo in ((R_WK, 0), (R_WV, 16384)):
        g(f"s_add_u32 m0, s{S_B}, {lo}\ns_nop 0")
        for i in range(4):
            g(f"buffer_load_dwordx4 v{V_L16}, {sr(R)}, s{S_A} offen offset:{1024 * i} lds")
    g(f"{lj}:")
    layernorm(g)
    l2 = g.lab("aj2")
    g(f"s_cmp_lg_u32 s{S_CG}, 7\ns_cbranch_scc1 {l2}")
    keep = list(g.vm)
    for s in range(8):
        wq_dma(s)
    g(f"s_waitcnt vmcnt(8)\n{l2}:")
    g.vm = keep
    g.wlg0()
    g.stamp(2)
    g("s_barrier")
    g("s_setprio 2")
    g.stamp(3)
    xfrag_addrs(g, VXA)
    tr_lane(g)
    g(f"""v_lshl_add_u32 v4, v5, 3, v4
    v_lshl_add_u32 v{VQT}, v4, 6, v6
    v_add_u32 v{VQT}, s{S_RING}, v{VQT}
    s_lshl_b32 s{S_A}, s{S_LO}, 2
    v_add_u32 v{V_CNTP}, s{S_A}, v{V_CNT}""")
    A0, A1, WF, XF = 128, 144, 160, 192
    for half in range(2):
        g.wvm0()
        for i in range(8):
            g.lds(f"ds_read_b64_tr_b16 {vr(WF + 4 * i, 2)}, v{VQT} offset:{1024 * i}", f"w{i}")
            g.lds(f"ds_read_b64_tr_b16 {vr(WF + 4 * i + 2, 2)}, v{VQT} offset:{1024 * i + 256}", f"w{i}")
        for i in range(8):
            s = 8 * half + i
            if i == 4:
                xfrag_next(g, VXA, s // 4 - 1)
            for rt in range(2):
                g.lds(f"ds_read_b128 {vr(XF + 8 * i + 4 * rt, 4)}, v{VXA + 4 * rt + (s & 3)} offset:{1024 * (s & 3)}", f"x{i}")
            if i == 3 and half == 0:
                g.wlg("w7")
                for s2 in range(8, 16):
                    wq_dma(s2)
        if half == 0:
            xfrag_next(g, VXA, 1)
        for i in range(8):
            g.wlg(f"w{i}", f"x{i}")
            first = half == 0 and i == 0
            g(mfma32(A0, WF + 4 * i, XF + 8 * i, "0" if first else None))
            g(mfma32(A1, WF + 4 * i, XF + 8 * i + 4, "0" if first else None))
    g(f"v_add_u32 v4, s{S_RING}, v{V_L16}\nv_add_u32 v5, s{S_PRING}, v{V_L16}")
    g(f"""s_lshl_b32 s{S_A}, s{S_KH}, 12
    s_lshl_b32 s{S_B}, s{S_LO}, 11
    s_add_u32 s{S_A}, s{S_A}, s{S_B}
    s_add_u32 s{S_A}, s{S_A}, {LQF}
    v_add_u32 v6, s{S_A}, v{V_L16}
    v_add_u32 v7, {LQF}, v{V_L16}
    s_nop 7""")
    for i in range(4):
        g.lds(f"ds_write_b128 v4, {vr(A1 + 4 * i, 4)} offset:{1024 * i}", "e")
    g.signal(V_CNTP, C_Q1)
    g.spin_lds(V_CNTP, C_Q1, 2, 0)
    for i in range(4):
        g.lds(f"ds_read_b128 {vr(WF + 4 * i, 4)}, v5 offset:{1024 * i}", f"e{i}")
    for i in range(4):
        g.wlg(f"e{i}")
        for j in range(4):
            g(f"v_add_f32 v{A0 + 4 * i + j}, v{A0 + 4 * i + j}, v{WF + 4 * i + j}")
    for i in range(8):
        g(f"v_cvt_pk_bf16_f32 v{A1 + i}, v{A0 + 2 * i}, v{A0 + 2 * i + 1}")
    g.lds(f"ds_write_b128 v6, {vr(A1, 4)}", "e")
    g.lds(f"ds_write_b128 v6, {vr(A1 + 4, 4)} offset:1024", "e")
    g.signal(V_CNT, C_Q2)
    Q, S0, S1, KV, ACC = 16, 48, 64, 80, 128
    VV, VP, VPL = 116, 117, 118
    g.wlg0()
    for i in range(128):
        g(f"v_mov_b32 v{ACC + i}, 0")
    for st in range(3):
        for i in range(8):
            g(f"v_mov_b32 v{KV + 12 * st + 4 + i}, 0")
    g("s_mov_b32 exec_lo, 0x00110000\ns_mov_b32 exec_hi, 0x00110000")
    for st in range(3):
        for i in range(8):
            g(f"v_mov_b32 v{KV + 12 * st + 4 + i}, 0x3f803f80")
    g(f"""s_mov_b64 exec, -1
    v_and_b32 v4, 15, v0
    v_lshrrev_b32 v5, 5, v0
    v_lshl_add_u32 v4, v5, 4, v4
    v_lshlrev_b32 v{VV}, 4, v4
    s_mul_i32 s{S_A}, s{S_IDX}, 2304
    v_add_u32 v{VP}, s{S_A}, v{V_L16}
    v_lshlrev_b32 v4, 2, v0
    v_add_u32 v{VPL}, s{S_A}, v4
    v_and_b32 v4, 7, v0
    v_lshlrev_b32 v4, 2, v4
    s_lshl_b32 s{S_B}, s{S_IDX}, 5
    s_lshl_b32 s{S_C}, s{S_IDX}, 15""")
    g.spin_lds(V_CNT, C_Q2, 4, 0)
    for q in range(8):
        g.lds(f"ds_read_b128 {vr(Q + 4 * q, 4)}, v7 offset:{1024 * q}", "q")
    g.stamp(4)
    l, d = g.lab("kvp"), g.lab("kvd")
    g(f"""s_mov_b32 s{S_SPIN}, {SPIN}
    {l}:
    buffer_load_dword v{V_T}, v4, {sr(R_DBG)}, s{S_B} offen sc1
    s_waitcnt vmcnt(0)
    v_cmp_ne_u32 vcc, 0, v{V_T}
    s_cmp_eq_u64 vcc, exec
    s_cbranch_scc1 {d}
    s_sleep {o.kvsleep}
    s_sub_u32 s{S_SPIN}, s{S_SPIN}, 1
    s_cmp_lg_u32 s{S_SPIN}, 0
    s_cbranch_scc1 {l}
    {d}:""")
    g.vm = []
    g.stamp(5)

    def kset(kt):
        return KV + 12 * (kt % 3)

    def load_k(kt):
        g.vmem(f"buffer_load_dwordx4 {vr(kset(kt), 4)}, v{V_L16}, {sr(R_WS)}, s{S_C} offen offset:{2048 * (kt & 1)} sc1", f"k{kt}")

    def load_v(kt):
        g(f"s_mov_b64 exec, {sr(S_MLO, 2)}")
        for j in range(2):
            g.vmem(f"buffer_load_dwordx4 {vr(kset(kt) + 4 + 4 * j, 4)}, v{VV}, {sr(R_WS)}, s{S_C} offen offset:{2048 * (kt & 1) + 1024 + 512 * j} sc1", f"v{kt}")
        g("s_mov_b64 exec, -1")
        if kt & 1:
            g(f"s_add_u32 s{S_C}, s{S_C}, 4096")

    for kt in range(2):
        load_k(kt)
        load_v(kt)
    g.wlg0()
    g.wvm("k0")
    g(mfma32(S0, kset(0), Q, "0"))
    g("s_nop 7\ns_nop 4")

    def part_writes(q):
        a, b = (VP, VPL) if q < 4 else (VP + 3, VPL + 3)
        off = 9216 * (q & 3)
        return [f"ds_write_b128 v{a}, {vr(ACC + 16 * q, 4)} offset:{off}",
                f"ds_write_b128 v{a}, {vr(ACC + 16 * q + 4, 4)} offset:{off + 1024}",
                f"ds_write_b32 v{b}, v{ACC + 16 * q + 8} offset:{off + 2048}"]

    g(f"v_add_u32 v{VP + 3}, {4 * 9216}, v{VP}\nv_add_u32 v{VPL + 3}, {4 * 9216}, v{VPL}")
    NT = 128
    for t in range(NT):
        kt, q = divmod(t, 8)
        cur, nxt = (S0, S1) if t % 2 == 0 else (S1, S0)
        extra = {}

        def at(e, f):
            extra.setdefault(e, []).append(f)

        if t > 0:
            ktp, qp = divmod(t - 1, 8)
            at(1, lambda ktp=ktp, qp=qp: g(smf(ACC + 16 * qp, kset(ktp) + 8, nxt + 8)))
        if t + 1 < NT:
            ktn, qn = divmod(t + 1, 8)
            if qn == 0:
                at(3, lambda ktn=ktn: g.wvm(f"k{ktn}"))
            at(4, lambda ktn=ktn, qn=qn: g(mfma32(nxt, kset(ktn), Q + 4 * qn, "0")))
        if q == 0:
            at(9, lambda: g.wvm(f"v{kt}"))
        at(10, lambda: g(smf(ACC + 16 * q, kset(kt) + 4, cur)))
        if q == 1 and kt + 2 < 16:
            at(6, lambda: load_k(kt + 2))
            at(12, lambda: load_v(kt + 2))
        if kt == 14 and q == 4:
            at(6, lambda: g.lds(f"ds_read_b64 v[4:5], v{V_CNT} offset:{C_G1}", "g1"))
        if kt == 14 and q == 6:
            def chk():
                ok = g.lab("g1ok")
                g.wlg0()
                g(f"""v_add_u32 v4, v4, v5
                s_nop 0
                v_readfirstlane_b32 s{S_T}, v4
                s_cmp_ge_u32 s{S_T}, 4
                s_cbranch_scc1 {ok}""")
                g.spin_lds(V_CNT, C_G1, 2)
                g.spin_lds(V_CNT, C_G1 + 4, 2)
                g(f"{ok}:")
            at(13, chk)
        if kt == 15 and q >= 2:
            for e, w in zip((2, 7, 12), part_writes(q - 2)):
                at(e, lambda w=w: g(w))
        for e in range(16):
            g(f"v_exp_f32 v{cur + e}, v{cur + e}")
            for f in extra.get(e, []):
                f()
    g("s_nop 1")
    g(smf(ACC + 16 * 7, kset(15) + 8, S1 + 8))
    for w in part_writes(6):
        g(w)
    g("s_nop 7\ns_nop 2")
    for w in part_writes(7):
        g(w)
    g.stamp(6)
    g.wlg0()


def g_wave(g):
    o = g.o
    VD, VT, VXA = 116, 119, 104
    S_WB = S_C
    g(f"""s_mul_i32 s{S_RING}, s{S_IDX}, 12288
    s_add_u32 s{S_RING}, s{S_RING}, {LGR}
    s_xor_b32 s{S_A}, s{S_IDX}, 2
    s_mul_i32 s{S_PRING}, s{S_A}, 12288
    s_add_u32 s{S_PRING}, s{S_PRING}, {LGR}
    s_mul_i32 s{S_WB}, s{S_KH}, {256 * 2752}
    s_mul_i32 s{S_A}, s{S_CG}, 384
    s_add_u32 s{S_WB}, s{S_WB}, s{S_A}
    s_mul_i32 s{S_A}, s{S_LO}, 192
    s_add_u32 s{S_WB}, s{S_WB}, s{S_A}
    s_mov_b32 s{S_A}, 0x15555556""")
    for i in range(3):
        g(f"""v_add_u32 v8, {64 * i}, v0
        v_mul_hi_u32 v9, v8, s{S_A}
        v_mul_u32_u24 v10, 12, v9
        v_sub_u32 v10, v8, v10
        v_mul_u32_u24 v9, 2752, v9
        v_lshl_add_u32 v{VD + i}, v10, 4, v9""")
        if i:
            g(f"v_subrev_u32 v{VD + i}, {1024 * i}, v{VD + i}")
    g(f"""v_mov_b32 v8, 0
    v_lshl_add_u32 v9, v0, 2, v{V_CNT}
    ds_write_b32 v9, v8""")

    def w1_dma(s):
        step_soff(g, s, 16 * 2752, S_WB)
        g(f"s_add_u32 m0, s{S_RING}, {3072 * (s & 3)}\ns_nop 0")
        for i in range(3):
            g.vmem(f"buffer_load_dwordx4 v{VD + i}, {sr(R_W1)}, s{S_SOF} offen offset:{1024 * i} lds", f"w{s}")

    layernorm(g)
    lkv, lj = g.lab("gkv"), g.lab("gj")
    g(f"s_cmp_eq_u32 s{S_CG}, 7\ns_cbranch_scc1 {lkv}")
    NPRE = o.npre
    for s in range(NPRE):
        w1_dma(s)
    g.wlg0()
    g.stamp(2)
    g("s_barrier")
    g.stamp(3)
    g(f"s_branch {lj}\n{lkv}:")
    keep = list(g.vm)
    g.vm = []
    g(f"""v_and_b32 v4, 15, v0
    v_lshrrev_b32 v5, 4, v0
    s_lshl_b32 s{S_A}, s{S_LO}, 4
    v_add_u32 v6, s{S_A}, v4
    s_lshl_b32 s{S_B}, s{S_KH}, 15
    v_xor_b32 v8, v6, v5
    v_lshlrev_b32 v8, 4, v8
    v_lshl_add_u32 v8, v5, 9, v8
    v_add_u32 v8, s{S_B}, v8
    v_xor_b32 v9, 64, v8
    v_add_u32 v9, 2048, v9
    v_bfe_u32 v10, v0, 2, 2
    v_lshl_add_u32 v10, v5, 3, v10
    v_lshlrev_b32 v10, 5, v10
    v_and_b32 v11, 3, v0
    v_lshl_add_u32 v10, v11, 3, v10
    v_add_u32 v10, {LGR}, v10
    v_and_b32 v11, 1, v5
    v_lshrrev_b32 v12, 1, v5
    v_lshl_add_u32 v13, v11, 5, v6
    v_lshlrev_b32 v13, 4, v13
    v_lshl_add_u32 v13, v12, 3, v13
    v_lshl_add_u32 v14, v12, 4, v4
    v_lshlrev_b32 v14, 4, v14
    v_lshl_add_u32 v14, v11, 3, v14
    s_lshl_b32 s{S_A}, s{S_LO}, 9
    s_add_u32 s{S_A}, s{S_A}, 1024
    v_add_u32 v14, s{S_A}, v14
    s_lshl_b32 s{S_D}, s{S_RB}, 12
    s_lshl_b32 s{S_A}, s{S_KH}, 11
    s_add_u32 s{S_D}, s{S_D}, s{S_A}
    s_setprio 3""")
    g.wlg0()
    g.stamp(2)
    g("s_barrier")
    g.stamp(3)
    FR = 128
    DK, DV = 16, 20

    def kv_reads(s):
        b = FR + 12 * (s % 3)
        g.lds(f"ds_read_b128 {vr(b, 4)}, v{8 + (s & 1)} offset:{4096 * (s >> 1)}", f"s{s}")
        for j in range(2):
            g.lds(f"ds_read_b64_tr_b16 {vr(b + 4 + 4 * j, 2)}, v10 offset:{1024 * s + 16384 * j}", f"s{s}")
            g.lds(f"ds_read_b64_tr_b16 {vr(b + 6 + 4 * j, 2)}, v10 offset:{1024 * s + 16384 * j + 128}", f"s{s}")

    kv_reads(0)
    kv_reads(1)
    for s in range(16):
        if s + 2 < 16:
            kv_reads(s + 2)
        g.wlg(f"s{s}")
        b = FR + 12 * (s % 3)
        g(f"v_mfma_f32_16x16x32_bf16 {vr(DK, 4)}, {vr(b + 4, 4)}, {vr(b, 4)}, {vr(DK, 4) if s else 0}")
        g(f"v_mfma_f32_16x16x32_bf16 {vr(DV, 4)}, {vr(b, 4)}, {vr(b + 8, 4)}, {vr(DV, 4) if s else 0}")
    g("s_nop 6")
    for i in range(4):
        g(f"v_mul_f32 v{DK + i}, {f32(0.25 / L2E)}, v{DK + i}")
    for i in range(4):
        g(f"v_mul_f32 v{DV + i}, {f32(-1 / L2E)}, v{DV + i}")
    g(f"""v_cvt_pk_bf16_f32 v{DK}, v{DK}, v{DK + 1}
    v_cvt_pk_bf16_f32 v{DK + 1}, v{DK + 2}, v{DK + 3}
    v_cvt_pk_bf16_f32 v{DV}, v{DV}, v{DV + 1}
    v_cvt_pk_bf16_f32 v{DV + 1}, v{DV + 2}, v{DV + 3}
    buffer_store_dwordx2 {vr(DK, 2)}, v13, {sr(R_WS)}, s{S_D} offen sc1
    buffer_store_dwordx2 {vr(DV, 2)}, v14, {sr(R_WS)}, s{S_D} offen sc1
    s_waitcnt vmcnt(0)""")
    nl = g.lab("kvnl")
    g(f"""s_mov_b64 exec, 1
    ds_add_rtn_u32 v{V_T}, v{V_CNT}, v{V_ONE} offset:{C_KV}
    s_waitcnt lgkmcnt(0)
    v_readfirstlane_b32 s{S_T}, v{V_T}
    s_cmp_lg_u32 s{S_T}, 3
    s_cbranch_scc1 {nl}
    s_lshl_b32 s{S_A}, s{S_RB}, 2
    buffer_store_dword v{V_ONE}, off, {sr(R_DBG)}, s{S_A} sc1
    {nl}:
    s_mov_b64 exec, -1""")
    g.spin_lds(V_CNT, C_KV, 4)
    for s in range(NPRE):
        w1_dma(s)
    g(f"{lj}:\ns_setprio 3")
    g.vm = keep
    for s in range(NPRE, 4):
        w1_dma(s)
    xfrag_addrs(g, VXA)
    tr_lane(g)
    g(f"""v_lshl_add_u32 v4, v5, 3, v4
    v_mul_u32_u24 v4, 192, v4
    v_add3_u32 v{VT}, v4, v6, s{S_RING}
    s_lshl_b32 s{S_A}, s{S_LO}, 2
    v_add_u32 v{V_CNTP}, s{S_A}, v{V_CNT}""")
    A0, A1 = 128, 176

    def fr(s):
        return 16 + 20 * (s & 1)

    def w1_reads(s):
        if s and (s & 3) == 0:
            xfrag_next(g, VXA, s // 4 - 1)
        g.wvm(f"w{s}")
        b = fr(s)
        for rt in range(2):
            g.lds(f"ds_read_b128 {vr(b + 12 + 4 * rt, 4)}, v{VXA + 4 * rt + (s & 3)} offset:{1024 * (s & 3)}", f"r{s}")
        for ct in range(3):
            for j in range(2):
                g.lds(f"ds_read_b64_tr_b16 {vr(b + 4 * ct + 2 * j, 2)}, v{VT} offset:{3072 * (s & 3) + 64 * ct + 768 * j}", f"r{s}")

    w1_reads(0)
    for s in range(16):
        g.wlg(f"r{s}")
        if s + 4 < 16:
            w1_dma(s + 4)
        if s + 1 < 16:
            w1_reads(s + 1)
        b = fr(s)
        g("s_setprio 0")
        for ct in range(3):
            g(mfma32(A1 + 16 * ct, b + 4 * ct, b + 16, None if s else "0"))
        for ct in range(3):
            g(mfma32(A0 + 16 * ct, b + 4 * ct, b + 12, None if s else "0"))
        g("s_setprio 3")
    g.stamp(4)
    g(f"""v_mov_b32 v8, -1
    v_mov_b32 v9, -1
    v_mov_b32 v10, -1
    v_mov_b32 v11, -1
    s_lshl_b32 s{S_A}, s{S_RB}, 16
    s_lshl_b32 s{S_B}, s{S_CG}, 12
    s_add_u32 s{S_A}, s{S_A}, s{S_B}
    s_lshl_b32 s{S_B}, s{S_IDX}, 10
    s_add_u32 s{S_A}, s{S_A}, s{S_B}
    s_add_u32 s{S_A}, s{S_A}, {OOFF}
    s_add_u32 s{S_B}, s{S_A}, 32768
    buffer_store_dwordx4 v[8:11], v{V_L16}, {sr(R_WS)}, s{S_A} offen sc1
    buffer_store_dwordx4 v[8:11], v{V_L16}, {sr(R_WS)}, s{S_B} offen sc1
    v_add_u32 v4, s{S_RING}, v{V_L16}
    v_add_u32 v5, s{S_PRING}, v{V_L16}""")
    for i in range(12):
        g.lds(f"ds_write_b128 v4, {vr(A1 + 4 * i, 4)} offset:{1024 * i}", "e")
    g.signal(V_CNTP, C_G1)
    g.spin_lds(V_CNTP, C_G1, 2)
    for i in range(12):
        g.lds(f"ds_read_b128 {vr(A1 + 4 * i, 4)}, v5 offset:{1024 * i}", f"e{i}")
    g(f"""s_mul_i32 s{S_A}, s{S_RB}, {HRB}
    s_mul_i32 s{S_B}, s{S_CG}, {6 * 4096}
    s_add_u32 s{S_A}, s{S_A}, s{S_B}
    s_mul_i32 s{S_B}, s{S_LO}, {3 * 4096}
    s_add_u32 s{S_A}, s{S_A}, s{S_B}
    s_lshl_b32 s{S_B}, s{S_KH}, 10
    s_add_u32 s{S_A}, s{S_A}, s{S_B}
    s_add_u32 s{S_A}, s{S_A}, {HOFF}""")
    for f in range(6):
        a, t = A0 + 8 * f, A1 + 8 * f
        g.wlg(f"e{2 * f + 1}")
        for i in range(0, 8, 2):
            g(f"v_pk_add_f32 {vr(a + i, 2)}, {vr(a + i, 2)}, {vr(t + i, 2)}")
        for i in range(8):
            g(f"v_exp_f32 v{t + i}, v{a + i}")
        for i in range(0, 8, 2):
            g(f"v_pk_add_f32 {vr(t + i, 2)}, {vr(t + i, 2)}, 1.0 op_sel_hi:[1,0]")
        for i in range(8):
            g(f"v_rcp_f32 v{t + i}, v{t + i}")
        for i in range(0, 8, 2):
            g(f"v_pk_mul_f32 {vr(a + i, 2)}, {vr(a + i, 2)}, {vr(t + i, 2)}")
        for i in range(4):
            g(f"v_cvt_pk_bf16_f32 v{16 + 4 * f + i}, v{a + 2 * i}, v{a + 2 * i + 1}")
        g(f"buffer_store_dwordx4 {vr(16 + 4 * f, 4)}, v{V_L16}, {sr(R_WS)}, s{S_A} offen offset:{2048 * (f & 1)} sc1")
        if f & 1:
            g(f"s_add_u32 s{S_A}, s{S_A}, 4096")
    g.signal(V_CNTP, C_G1B)
    g.wvm0()
    g.stamp(5)
    nl = g.lab("hnl")
    g(f"""s_mov_b64 exec, 1
    ds_add_rtn_u32 v{V_T}, v{V_CNT}, v{V_ONE} offset:{C_H}
    s_waitcnt lgkmcnt(0)
    v_readfirstlane_b32 s{S_E}, v{V_T}
    s_lshl_b32 s{S_D}, s{S_RB}, 2
    s_cmp_lg_u32 s{S_E}, 3
    s_cbranch_scc1 {nl}
    buffer_atomic_add v{V_ONE}, off, {sr(R_DBG)}, s{S_D} offset:128 sc1
    {nl}:
    s_mov_b64 exec, -1""")
    g.spin_lds(V_CNTP, C_G1B, 2)
    VT0, VT1 = 118, 119
    g(f"""v_lshrrev_b32 v4, 3, v0
    v_and_b32 v5, 7, v0
    v_bfe_u32 v6, v0, 4, 1
    v_lshlrev_b32 v6, 2, v6
    v_xor_b32 v5, v5, v6
    v_lshlrev_b32 v{VD}, 10, v4
    v_lshl_add_u32 v{VD}, v5, 4, v{VD}
    v_add_u32 v{VD + 1}, {8192 - 1024}, v{VD}""")
    tr_lane(g)
    g(f"""v_lshrrev_b32 v8, 1, v4
    v_xor_b32 v8, s{S_KH}, v8
    v_lshl_add_u32 v6, v8, 6, v6
    v_lshl_add_u32 v4, v5, 2, v4
    v_lshl_add_u32 v4, v4, 7, v6
    v_add_u32 v{VT0}, s{S_RING}, v4
    v_xor_b32 v4, 64, v4
    v_add_u32 v{VT1}, s{S_RING}, v4
    s_mul_i32 s{S_WB}, s{S_IDX}, {352 * 1024}
    s_lshl_b32 s{S_A}, s{S_CG}, 7
    s_add_u32 s{S_WB}, s{S_WB}, s{S_A}
    s_xor_b32 s{S_A}, s{S_IDX}, 1
    s_mul_i32 s{S_PRING}, s{S_A}, 12288
    s_add_u32 s{S_PRING}, s{S_PRING}, {LGR}
    s_lshl_b32 s{S_A}, s{S_KH}, 2
    v_add_u32 v{V_CNTP}, s{S_A}, v{V_CNT}
    s_lshl_b32 s{S_A}, s{S_LO}, 10
    v_add_u32 v120, s{S_A}, v{V_L16}
    v_xor_b32 v121, 1024, v120
    s_mul_i32 s{S_B}, s{S_IDX}, {11 * 4096}""")

    def w_dma(R, s, tag):
        g(f"s_add_u32 m0, s{S_RING}, {2048 * (s % 6)}\ns_nop 0")
        for i in range(2):
            g.vmem(f"buffer_load_dwordx4 v{VD + i}, {sr(R)}, s{S_WB} offen offset:{1024 * i} lds", tag)
        g(f"s_add_u32 s{S_WB}, s{S_WB}, 16384")

    for s in range(6):
        w_dma(R_W2, s, f"w{s}")
    XR = 96
    g(f"""v_and_b32 v4, 31, v0
    v_lshrrev_b32 v5, 5, v0
    v_lshlrev_b32 v4, 10, v4
    v_lshl_add_u32 v122, v5, 3, v4
    v_lshl_add_u32 v123, v5, 4, v4
    s_lshl_b32 s{S_K2}, s{S_RB}, 16
    s_lshl_b32 s{S_A}, s{S_LO}, 15
    s_add_u32 s{S_K2}, s{S_K2}, s{S_A}
    s_lshl_b32 s{S_A}, s{S_CG}, 7
    s_add_u32 s{S_K2}, s{S_K2}, s{S_A}
    s_lshl_b32 s{S_A}, s{S_KH}, 6
    s_add_u32 s{S_K2}, s{S_K2}, s{S_A}""")
    for i in range(4):
        g.vmem(f"buffer_load_dwordx2 {vr(XR + 2 * i, 2)}, v122, {sr(R_X)}, s{S_K2} offen offset:{16 * i}", "xr")
    l, d, oth, j2 = g.lab("hp"), g.lab("hd"), g.lab("ho"), g.lab("hj")
    g(f"""s_cmp_lg_u32 s{S_E}, 3
    s_cbranch_scc1 {oth}
    s_mov_b32 s{S_SPIN}, {SPIN}
    {l}:
    buffer_load_dword v{V_T}, off, {sr(R_DBG)}, s{S_D} offset:128 sc1
    s_waitcnt vmcnt(0)
    v_readfirstlane_b32 s{S_T}, v{V_T}
    s_cmp_ge_u32 s{S_T}, 8
    s_cbranch_scc1 {d}
    s_sleep {o.hsleep}
    s_sub_u32 s{S_SPIN}, s{S_SPIN}, 1
    s_cmp_lg_u32 s{S_SPIN}, 0
    s_cbranch_scc1 {l}
    {d}:""")
    g.signal(V_CNT, C_H2)
    g(f"s_branch {j2}\n{oth}:")
    g.spin_lds(V_CNT, C_H2, 1, 4)
    g(f"{j2}:")
    g.lg = ["sig"]
    g.stamp(6)
    HD = 6
    HF, WFb = 128, 80
    B0, B1 = 16, 48

    def h_load(s):
        for rt in range(2):
            g.vmem(f"buffer_load_dwordx4 {vr(HF + 8 * (s % HD) + 4 * rt, 4)}, v{120 + rt}, {sr(R_H)}, s{S_B} offen offset:{2048 * (s & 1)} sc1", f"h{s}")
        if s & 1:
            g(f"s_add_u32 s{S_B}, s{S_B}, 4096")

    def w_reads(s, dst):
        for ct in range(2):
            for j in range(2):
                g.lds(f"ds_read_b64_tr_b16 {vr(dst + 4 * ct + 2 * j, 2)}, v{VT0 + ct} offset:{2048 * (s % 6) + 1024 * j}", f"r{s}")

    for s in range(HD):
        h_load(s)
    g.wvm("w0")
    w_reads(0, WFb)
    for s in range(22):
        g.wlg(f"r{s}")
        if s + 6 < 22:
            w_dma(R_W2, s + 6, f"w{s + 6}")
        if s + 1 < 22:
            g.wvm(f"w{s + 1}", f"h{s}")
            w_reads(s + 1, WFb + 8 * ((s + 1) & 1))
        g.wvm(f"h{s}")
        wb, hb = WFb + 8 * (s & 1), HF + 8 * (s % HD)
        g("s_setprio 0")
        for ct in range(2):
            g(mfma32(B1 + 16 * ct, wb + 4 * ct, hb + 4, None if s else "0"))
        for ct in range(2):
            g(mfma32(B0 + 16 * ct, wb + 4 * ct, hb, None if s else "0"))
        g("s_setprio 3")
        if s + HD < 22:
            h_load(s + HD)
    g.stamp(7)
    g(f"""v_add_u32 v4, s{S_RING}, v{V_L16}
    v_add_u32 v5, s{S_PRING}, v{V_L16}
    s_nop 7
    s_nop 1""")
    for i in range(8):
        g.lds(f"ds_write_b128 v4, {vr(B1 + 4 * i, 4)} offset:{1024 * i}", "e")
    g.signal(V_CNTP, C_G2)
    g.spin_lds(V_CNTP, C_G2, 2)
    for i in range(8):
        g.lds(f"ds_read_b128 {vr(B1 + 4 * i, 4)}, v5 offset:{1024 * i}", f"e{i}")
    g.wlg0()
    g.signal(V_CNTP, C_G2B)
    g(f"s_mov_b32 s{S_A}, {f32(-1 / L2E)}")
    for i in range(0, 32, 2):
        g(f"v_pk_add_f32 {vr(B0 + i, 2)}, {vr(B0 + i, 2)}, {vr(B1 + i, 2)}")
    for i in range(8):
        g(f"v_lshlrev_b32 v{B1 + 2 * i}, 16, v{XR + i}")
        g(f"v_and_b32 v{B1 + 2 * i + 1}, 0xffff0000, v{XR + i}")
    for i in range(16):
        g(f"v_fma_f32 v{B0 + i}, v{B0 + i}, s{S_A}, v{B1 + i}")
    for i in range(16, 32):
        g(f"v_mul_f32 v{B0 + i}, s{S_A}, v{B0 + i}")
    g.spin_lds(V_CNTP, C_G2B, 2)
    g(f"""s_lshl_b32 s{S_WB}, s{S_KH}, 18
    s_lshl_b32 s{S_A}, s{S_CG}, 7
    s_add_u32 s{S_WB}, s{S_WB}, s{S_A}""")
    g.vm = []
    for s in range(6):
        w_dma(R_WO, s, f"w{s}")
    for s in range(16):
        g.wvm(f"w{s}")
        w_reads(s, 128 + 8 * s)
        if s + 6 < 16:
            g.wlg0()
            w_dma(R_WO, s + 6, f"w{s + 6}")
    g.wlg0()
    g.stamp(8)


def finalize(g):
    T = 48
    g(f"""s_mul_i32 s{S_A}, s{S_W}, 9216
    v_add_u32 v4, s{S_A}, v{V_L16}
    v_lshlrev_b32 v5, 2, v0
    v_add_u32 v5, s{S_A}, v5
    s_lshl_b32 s{S_D}, s{S_RB}, 16
    s_lshl_b32 s{S_B}, s{S_CG}, 12
    s_add_u32 s{S_D}, s{S_D}, s{S_B}
    s_lshl_b32 s{S_B}, s{S_IDX}, 10
    s_add_u32 s{S_D}, s{S_D}, s{S_B}
    s_lshr_b32 s{S_B}, s{S_W}, 2
    s_lshl_b32 s{S_B}, s{S_B}, 15
    s_add_u32 s{S_D}, s{S_D}, s{S_B}
    s_add_u32 s{S_D}, s{S_D}, {OOFF}
    s_mov_b32 s{S_A}, {f32(2.0 ** -40)}
    s_mov_b32 s{S_B}, {f32(2.0 ** 40)}
    s_barrier""")
    g.stamp(9)
    for a in range(4):
        g.lds(f"ds_read_b32 v{T + 40 + a}, v5 offset:{2304 * a + 2048}", "l")
    for a in range(4):
        for j in range(2):
            g.lds(f"ds_read_b128 {vr(T + (8 + 8 * a if a else 0) + 4 * j, 4)}, v4 offset:{2304 * a + 1024 * j}", f"p{a}")
    g.wlg("l")
    g(f"""v_add_f32 v{T + 40}, v{T + 40}, v{T + 41}
    v_add_f32 v{T + 42}, v{T + 42}, v{T + 43}
    v_add_f32 v{T + 8}, v{T + 40}, v{T + 42}
    v_cmp_lt_f32 vcc, s{S_A}, v{T + 8}
    v_cmp_gt_f32 s[98:99], s{S_B}, v{T + 8}""")
    for a in range(1, 4):
        g.wlg(f"p{a}")
        for i in range(0, 8, 2):
            g(f"v_pk_add_f32 {vr(T + i, 2)}, {vr(T + i, 2)}, {vr(T + 8 + 8 * a + i, 2)}")
    g(f"""s_and_b64 vcc, vcc, s[98:99]
    s_cmp_eq_u64 vcc, exec
    {"s_cbranch_scc0 L_slow" if not g.o.forceslow else "s_branch L_slow"}
    L_norm:
    v_rcp_f32 v{T + 8}, v{T + 8}
    s_nop 0""")
    for i in range(8):
        g(f"v_mul_f32 v{T + i}, v{T + i}, v{T + 8}")
    for i in range(4):
        g(f"v_cvt_pk_bf16_f32 v{T + 12 + i}, v{T + 2 * i}, v{T + 2 * i + 1}")
    g(f"""v_min_u32 v{T + 12}, 0xfffffffe, v{T + 12}
    buffer_store_dwordx4 {vr(T + 12, 4)}, v{V_L16}, {sr(R_WS)}, s{S_D} offen sc1""")


def slow_path(g):
    T, S, Q, K, V, M = 48, 64, 80, 84, 88, 96
    l1, l2 = g.lab("s1"), g.lab("s2")
    g(f"""L_slow:
    s_lshl_b32 s{S_A}, s{S_W}, 10
    s_add_u32 s{S_A}, s{S_A}, {LQF}
    v_add_u32 v4, s{S_A}, v{V_L16}
    ds_read_b128 {vr(Q, 4)}, v4
    v_and_b32 v4, 15, v0
    v_lshrrev_b32 v5, 5, v0
    v_lshl_add_u32 v4, v5, 4, v4
    v_lshlrev_b32 v4, 4, v4
    v_mov_b32 v{M}, 0xff800000""")
    for i in range(16):
        g(f"v_mov_b32 v{T + i}, 0")
    for i in range(8):
        g(f"v_mov_b32 v{V + i}, 0x3f803f80")
    g(f"""s_mov_b32 s{S_A}, {KVOFF}
    s_waitcnt vmcnt(0) lgkmcnt(0)
    {l1}:
    buffer_load_dwordx4 {vr(K, 4)}, v{V_L16}, {sr(R_WS)}, s{S_A} offen sc1
    s_waitcnt vmcnt(0)
    {mfma32(S, K, Q, "0")}
    s_nop 15""")
    for i in range(0, 16, 2):
        g(f"v_max3_f32 v{M}, v{M}, v{S + i}, v{S + i + 1}")
    g(f"""s_add_u32 s{S_A}, s{S_A}, 2048
    s_cmp_lt_u32 s{S_A}, {KVOFF + 64 * 2048}
    s_cbranch_scc1 {l1}
    v_mov_b32 v{M + 1}, v{M}
    s_nop 1
    v_permlane32_swap_b32 v{M}, v{M + 1}
    s_nop 1
    v_max_f32 v{M}, v{M}, v{M + 1}
    s_mov_b32 s{S_A}, {KVOFF}
    {l2}:
    buffer_load_dwordx4 {vr(K, 4)}, v{V_L16}, {sr(R_WS)}, s{S_A} offen sc1
    s_mov_b64 exec, {sr(S_MLO, 2)}
    buffer_load_dwordx4 {vr(V, 4)}, v4, {sr(R_WS)}, s{S_A} offen offset:1024 sc1
    buffer_load_dwordx4 {vr(V + 4, 4)}, v4, {sr(R_WS)}, s{S_A} offen offset:1536 sc1
    s_mov_b64 exec, -1
    s_waitcnt vmcnt(0)
    {mfma32(S, K, Q, "0")}
    s_nop 15""")
    for i in range(16):
        g(f"v_sub_f32 v{S + i}, v{S + i}, v{M}")
    for i in range(16):
        g(f"v_exp_f32 v{S + i}, v{S + i}")
    g(f"""s_nop 1
    {smf(T, V, S)}
    {smf(T, V + 4, S + 8)}
    s_nop 15
    s_add_u32 s{S_A}, s{S_A}, 2048
    s_cmp_lt_u32 s{S_A}, {KVOFF + 64 * 2048}
    s_cbranch_scc1 {l2}
    s_branch L_norm""")


def g_tail(g):
    o = g.o
    OF, B0, WO = 48, 16, 128
    l, d = g.lab("op"), g.lab("od")
    g(f"""s_lshl_b32 s{S_A}, s{S_RB}, 16
    s_lshl_b32 s{S_B}, s{S_LO}, 15
    s_add_u32 s{S_A}, s{S_A}, s{S_B}
    s_lshl_b32 s{S_B}, s{S_KH}, 14
    s_add_u32 s{S_A}, s{S_A}, s{S_B}
    s_add_u32 s{S_A}, s{S_A}, {OOFF}
    s_add_u32 s{S_B}, s{S_A}, 4096
    s_add_u32 s{S_C}, s{S_A}, 8192
    s_add_u32 s{S_D}, s{S_A}, 12288
    s_xor_b32 s{S_E}, s{S_IDX}, 2
    s_mul_i32 s{S_PRING}, s{S_E}, 12288
    s_add_u32 s{S_PRING}, s{S_PRING}, {LGR}
    v_add_u32 v4, s{S_RING}, v{V_L16}
    v_add_u32 v5, s{S_PRING}, v{V_L16}
    s_mov_b32 s{S_SPIN}, {SPIN}
    s_waitcnt vmcnt(0)
    {l}:""")
    for i in range(16):
        g(f"buffer_load_dwordx4 {vr(OF + 4 * i, 4)}, v{V_L16}, {sr(R_WS)}, s{S_A + (i >> 2)} offen offset:{1024 * (i & 3)} sc1")
    g(f"s_waitcnt vmcnt(13)\nv_max3_u32 v6, v{OF}, v{OF + 4}, v{OF + 8}")
    for i in range(3, 15, 2):
        g(f"s_waitcnt vmcnt({14 - i})\nv_max3_u32 v6, v6, v{OF + 4 * i}, v{OF + 4 * i + 4}")
    g(f"""s_waitcnt vmcnt(0)
    v_max_u32 v6, v6, v{OF + 60}
    v_cmp_eq_u32 vcc, -1, v6
    s_cmp_eq_u64 vcc, 0
    s_cbranch_scc1 {d}
    s_sub_u32 s{S_SPIN}, s{S_SPIN}, 1
    s_cmp_lg_u32 s{S_SPIN}, 0
    s_cbranch_scc1 {l}
    {d}:""")
    g.stamp(10)
    for s in range(16):
        g(mfma32(B0 + 16, WO + 8 * s + 4, OF + 4 * s))
    for s in range(16):
        g(mfma32(B0, WO + 8 * s, OF + 4 * s))
        if s >= 12:
            g(f"ds_write_b128 v4, {vr(B0 + 16 + 4 * (s - 12), 4)} offset:{1024 * (s - 12)}")
    g("s_waitcnt lgkmcnt(0)\ns_barrier")
    for i in range(4):
        g.lds(f"ds_read_b128 {vr(OF + 4 * i, 4)}, v5 offset:{1024 * i}", f"e{i}")
    g("s_nop 7")
    for i in range(4):
        g.wlg(f"e{i}")
        for j in range(0, 4, 2):
            g(f"v_pk_add_f32 {vr(B0 + 4 * i + j, 2)}, {vr(B0 + 4 * i + j, 2)}, {vr(OF + 4 * i + j, 2)}")
        for j in range(2):
            g(f"v_cvt_pk_bf16_f32 v{B0 + 16 + 2 * i + j}, v{B0 + 4 * i + 2 * j}, v{B0 + 4 * i + 2 * j + 1}")
        if i & 1:
            b = B0 + 16 + 2 * (i - 1)
            g(f"""s_nop 1
            v_permlane32_swap_b32 v{b}, v{b + 2}
            v_permlane32_swap_b32 v{b + 1}, v{b + 3}
            buffer_store_dwordx4 {vr(b, 4)}, v123, {sr(R_OUT)}, s{S_K2} offen offset:{16 * (i - 1)}""")


def dump_stamps(g):
    if not g.o.prof:
        return
    g("s_waitcnt vmcnt(0)")
    g.stamp(11)
    g(f"""s_waitcnt lgkmcnt(0)
    s_lshl_b32 s{S_A}, s2, 3
    s_add_u32 s{S_A}, s{S_A}, s{S_W}
    s_lshl_b32 s{S_A}, s{S_A}, 6
    s_add_u32 s{S_A}, s{S_A}, {STOFF}""")
    for i in range(12):
        g(f"v_mov_b32 v{4 + i}, s{S_ST + 2 * i}")
    g("s_mov_b64 exec, 1")
    for i in range(3):
        g(f"buffer_store_dwordx4 {vr(4 + 4 * i, 4)}, off, {sr(R_WS)}, s{S_A} offset:{16 * i}")


def build(o):
    g = Gen(o)
    prologue(g)
    vm0 = list(g.vm)
    g(f"s_cmp_ge_u32 s{S_W}, 4\ns_cbranch_scc1 L_awave")
    g_wave(g)
    g("s_branch L_fin\nL_awave:")
    g.vm, g.lg = list(vm0), []
    a_wave(g)
    g("L_fin:")
    g.vm, g.lg = [], []
    finalize(g)
    g(f"s_cmp_ge_u32 s{S_W}, 4\ns_cbranch_scc1 L_done")
    g_tail(g)
    g("L_done:")
    dump_stamps(g)
    g("L_end:\ns_endpgm")
    slow_path(g)
    head = open("cdna_kernels/" + NAME + ".s.ref").read().split("; Override launch")[0]
    out = head + f"; @launch grid=(256,1,1) block=(512,1,1) lds={LDS_BYTES}\n"
    out += f""".amdgcn_target "amdgcn-amd-amdhsa--gfx950"
.text
.globl {NAME}_kernel
.p2align 8
.type {NAME}_kernel,@function
{NAME}_kernel:
"""
    out += "\n".join(g.L) + "\n"
    out += f""".section .rodata,"a"
.p2align 6
.amdhsa_kernel {NAME}_kernel
  .amdhsa_next_free_vgpr 256
  .amdhsa_next_free_sgpr 102
  .amdhsa_accum_offset 256
  .amdhsa_group_segment_fixed_size 0
  .amdhsa_kernarg_size 88
  .amdhsa_user_sgpr_count 2
  .amdhsa_user_sgpr_kernarg_segment_ptr 1
  .amdhsa_system_sgpr_workgroup_id_x 1
.end_amdhsa_kernel
"""
    return out


def parse(argv):
    p = argparse.ArgumentParser()
    p.add_argument("-o", default="cdna_kernels/" + NAME + ".s")
    p.add_argument("--prof", type=int, default=0)
    p.add_argument("--lr", type=int, default=2)
    p.add_argument("--rot", type=int, default=1)
    p.add_argument("--npre", type=int, default=2)
    p.add_argument("--kvsleep", type=int, default=2)
    p.add_argument("--hsleep", type=int, default=8)
    p.add_argument("--forceslow", type=int, default=0)
    return p.parse_args(argv)


if __name__ == "__main__":
    o = parse(sys.argv[1:])
    open(o.o, "w").write(build(o))
```

```python
import sys, struct, argparse

NAME = "parallel_sum__grouped_kv_mqa__dense_activation_silu__prompt"
L2E = 1.4426950408889634


def f32(x):
    return "0x%08x" % struct.unpack("<I", struct.pack("<f", x))[0]


KVOFF = 0
OOFF = 0x20000
HOFF = 0x240000
HRB = 48 * 4096
FOFF = 0x8F0000
STOFF = 0x900000
WSUSED = 0xA00000

LX = 0
LQR = 65536
LGR = 98304
LQF = 147456
LCNT = 155648
LDS_BYTES = 163840
C_Q1, C_Q2, C_G1, C_G1B, C_H, C_H2, C_G2, C_G2B, C_KV = 0, 8, 16, 24, 32, 36, 40, 48, 56

SPIN = 1 << 20


class Gen:
    def __init__(self, o):
        self.o = o
        self.L = []
        self.nlab = 0
        self.vm = []
        self.lg = []

    def __call__(self, s):
        for ln in s.split("\n"):
            ln = ln.strip()
            if ln:
                self.L.append(("" if ln.endswith(":") else "    ") + ln)

    def lab(self, p):
        self.nlab += 1
        return f"L_{p}_{self.nlab}"

    def vmem(self, s, tag):
        self(s)
        self.vm.append(tag)

    def lds(self, s, tag):
        self(s)
        self.lg.append(tag)

    def _n(self, q, tags):
        last = -1
        for i, t in enumerate(q):
            if t in tags:
                last = i
        return last

    def wvm(self, *tags):
        i = self._n(self.vm, tags)
        if i < 0:
            return
        n = min(len(self.vm) - 1 - i, 62)
        self(f"s_waitcnt vmcnt({n})")
        self.vm = self.vm[len(self.vm) - n:] if n else []

    def wlg(self, *tags):
        i = self._n(self.lg, tags)
        if i < 0:
            return
        n = min(len(self.lg) - 1 - i, 14)
        self(f"s_waitcnt lgkmcnt({n})")
        self.lg = self.lg[len(self.lg) - n:] if n else []

    def wvm0(self):
        self("s_waitcnt vmcnt(0)")
        self.vm = []

    def wlg0(self):
        self("s_waitcnt lgkmcnt(0)")
        self.lg = []

    def stamp(self, i):
        if self.o.prof:
            self(f"s_memrealtime s[{S_ST + 2 * i}:{S_ST + 2 * i + 1}]")

    def signal(self, vaddr, off):
        self(f"""s_mov_b64 exec, 1
        ds_add_u32 v{vaddr}, v{V_ONE} offset:{off}
        s_mov_b64 exec, -1""")
        self.lg.append("sig")

    def spin_lds(self, vaddr, off, target, sleep=1):
        l, d = self.lab("sp"), self.lab("spd")
        self(f"""s_mov_b32 s{S_SPIN}, {SPIN}
        {l}:
        ds_read_b32 v{V_T}, v{vaddr} offset:{off}
        s_waitcnt lgkmcnt(0)
        v_readfirstlane_b32 s{S_T}, v{V_T}
        s_cmp_ge_u32 s{S_T}, {target}
        s_cbranch_scc1 {d}
        s_sleep {sleep}
        s_sub_u32 s{S_SPIN}, s{S_SPIN}, 1
        s_cmp_lg_u32 s{S_SPIN}, 0
        s_cbranch_scc1 {l}
        {d}:""")
        self.lg = []


def vr(a, n):
    return f"v[{a}:{a + n - 1}]"


def sr(a, n=4):
    return f"s[{a}:{a + n - 1}]"


S_W, S_RB, S_CG, S_ROT = 26, 27, 3, 96
R_X, R_WQ, R_WK, R_WV, R_WO, R_W1, R_W2, R_OUT, R_DBG, R_WS, R_H = 28, 32, 36, 40, 44, 48, 52, 56, 60, 64, 68
S_A, S_B, S_C, S_D, S_E = 4, 5, 6, 7, 8
S_T, S_SPIN = 9, 10
S_KH, S_LO = 11, 12
S_RING, S_PRING = 13, 14
S_SOF = 15
S_MLO = 16
S_IDX = 18
S_K1, S_K2 = 19, 20
S_ST = 72

V_LANE, V_T, V_ONE, V_IDX = 0, 1, 2, 3
V_L16 = 124
V_CNT, V_CNTP = 125, 126


def mfma32(d, a, b, c=None):
    cs = vr(d, 16) if c is None else c
    return f"v_mfma_f32_32x32x16_bf16 {vr(d, 16)}, {vr(a, 4)}, {vr(b, 4)}, {cs}"


def smf(d, a, b):
    return f"v_smfmac_f32_32x32x32_bf16 {vr(d, 16)}, {vr(a, 4)}, {vr(b, 8)}, v{V_IDX}"


def srd(g, r, p, nbytes):
    g(f"""s_mov_b32 s{r}, s{p}
    s_mov_b32 s{r + 1}, s{p + 1}
    s_mov_b32 s{r + 2}, {nbytes}
    s_mov_b32 s{r + 3}, 0x00020000""")


def prologue(g):
    o = g.o
    lr = o.lr
    lc = 5 - lr
    g(f"""s_cmp_ge_u32 s2, 256
    s_cbranch_scc1 L_end
    s_load_dwordx16 s[4:19], s[0:1], 0
    s_load_dwordx4 s[20:23], s[0:1], 64
    s_load_dwordx2 s[24:25], s[0:1], 80""")
    g.stamp(0)
    g(f"""v_lshrrev_b32 v1, 6, v0
    v_and_b32 v0, 63, v0
    s_and_b32 s97, s2, 7
    v_readfirstlane_b32 s{S_W}, v1
    s_lshr_b32 s98, s2, 3
    s_and_b32 s99, s98, {(1 << lc) - 1}
    s_lshr_b32 s{S_ROT}, s98, {lc}
    s_and_b32 s100, s97, {(8 >> lc) - 1}
    s_lshl_b32 s100, s100, {lc}
    s_add_u32 s{S_CG}, s99, s100
    s_lshr_b32 s97, s97, {3 - lc}
    s_lshl_b32 s{S_RB}, s97, {lr}
    s_add_u32 s{S_RB}, s{S_RB}, s{S_ROT}
    s_and_b32 s{S_ROT}, s{S_ROT}, {3 if o.rot else 0}
    s_lshl_b32 s99, s99, {3 - lc}
    s_and_b32 s99, s99, {7 if o.rot else 0}
    s_add_u32 s99, s99, s{S_W}
    s_and_b32 s99, s99, 7
    v_lshrrev_b32 v4, 3, v0
    v_and_b32 v5, 7, v0
    v_lshlrev_b32 v6, 10, v4
    v_lshl_add_u32 v6, v5, 4, v6
    s_lshl_b32 s97, s{S_RB}, 16
    s_lshl_b32 s98, s99, 13
    s_add_u32 s97, s97, s98
    s_waitcnt lgkmcnt(0)""")
    srd(g, R_X, 4, 2048 * 1024)
    for j in range(8):
        g.vmem(f"buffer_load_dwordx4 {vr(16 + 4 * j, 4)}, v6, {sr(R_X)}, s97 offen offset:{128 * j}", f"x{j}")
    srd(g, R_WQ, 6, 512 * 1024)
    srd(g, R_WK, 8, 512 * 32)
    srd(g, R_WV, 10, 512 * 32)
    srd(g, R_WO, 12, 512 * 1024)
    srd(g, R_W1, 16, 512 * 2752)
    srd(g, R_W2, 18, 1376 * 1024)
    srd(g, R_OUT, 20, 2048 * 1024)
    srd(g, R_DBG, 22, 256)
    srd(g, R_WS, 24, WSUSED)
    g(f"""s_mul_i32 s98, s{S_RB}, {HRB}
    s_add_u32 s98, s98, {HOFF}
    s_add_u32 s{R_H}, s24, s98
    s_addc_u32 s{R_H + 1}, s25, 0
    s_mov_b32 s{R_H + 2}, {43 * 4096}
    s_mov_b32 s{R_H + 3}, 0x00020000
    s_and_b32 s{S_IDX}, s{S_W}, 3
    s_and_b32 s{S_LO}, s{S_W}, 1
    s_lshr_b32 s{S_KH}, s{S_IDX}, 1
    s_mov_b32 s{S_MLO}, 0x0000ffff
    s_mov_b32 s{S_MLO + 1}, 0x0000ffff
    v_lshlrev_b32 v{V_L16}, 4, v0
    v_mov_b32 v{V_ONE}, 1
    v_mov_b32 v123, 0
    v_mov_b32 v{V_IDX}, 0xdddddddd
    v_mov_b32 v{V_CNT}, {LCNT}""")
    g(f"""s_and_b32 s97, s99, 3
    s_lshl_b32 s97, s97, 3
    s_lshr_b32 s98, s99, 2
    s_lshl_b32 s98, s98, 15
    v_add_u32 v7, s97, v4
    v_xor_b32 v7, v7, v5
    v_lshlrev_b32 v7, 4, v7
    v_lshl_add_u32 v7, v5, 9, v7
    v_add_u32 v7, s98, v7""")


def layernorm(g, hooks=()):
    g(f"""s_mov_b32 s{S_K1}, 0x3f803f80
    v_mov_b32 v8, 0
    v_mov_b32 v9, 0
    v_mov_b32 v10, 0
    v_mov_b32 v11, 0""")
    for j in range(8):
        g.wvm(f"x{j}")
        for i in range(4):
            r = 16 + 4 * j + i
            g(f"v_dot2c_f32_bf16 v{8 + (i & 1)}, s{S_K1}, v{r}")
            g(f"v_dot2c_f32_bf16 v{10 + (i & 1)}, v{r}, v{r}")
    g.stamp(1)
    dpp = "row_mask:0xf bank_mask:0xf"
    g(f"""s_nop 2
    v_add_f32 v8, v8, v9
    v_add_f32 v10, v10, v11
    s_nop 0
    v_add_f32_dpp v8, v8, v8 quad_perm:[1,0,3,2] {dpp}
    v_add_f32_dpp v10, v10, v10 quad_perm:[1,0,3,2] {dpp}
    s_nop 0
    v_add_f32_dpp v8, v8, v8 quad_perm:[2,3,0,1] {dpp}
    v_add_f32_dpp v10, v10, v10 quad_perm:[2,3,0,1] {dpp}
    s_nop 0
    v_add_f32_dpp v8, v8, v8 row_half_mirror {dpp}
    v_add_f32_dpp v10, v10, v10 row_half_mirror {dpp}
    v_mul_f32 v8, {f32(1 / 512)}, v8
    v_mul_f32 v10, {f32(1 / 512)}, v10
    v_fma_f32 v10, -v8, v8, v10
    v_max_f32 v10, 0, v10
    v_cvt_pk_bf16_f32 v8, v8, v10
    v_and_b32 v10, 0xffff0000, v8
    v_lshlrev_b32 v8, 16, v8
    v_add_f32 v10, {f32(1e-5)}, v10
    v_cvt_pk_bf16_f32 v10, v10, v10
    v_and_b32 v10, 0xffff0000, v10
    v_sqrt_f32 v10, v10
    s_nop 0
    v_cvt_pk_bf16_f32 v10, v10, v10
    v_and_b32 v10, 0xffff0000, v10
    v_rcp_f32 v10, v10
    s_nop 0
    v_mul_f32 v10, {f32(-L2E)}, v10
    v_cvt_pk_bf16_f32 v10, v10, v10
    v_and_b32 v11, 0xffff0000, v10
    v_lshrrev_b32 v10, 16, v10
    v_mul_f32 v8, v8, v11
    v_sub_f32 v8, 0, v8""")
    for j in range(8):
        t = 48 + 8 * (j & 1)
        if j < len(hooks):
            hooks[j]()
        for i in range(4):
            r = 16 + 4 * j + i
            g(f"v_dot2_f32_bf16 v{t + 2 * i}, v{r}, v10, v8")
            g(f"v_dot2_f32_bf16 v{t + 2 * i + 1}, v{r}, v11, v8")
        if j > 0:
            p = 48 + 8 * ((j - 1) & 1)
            for i in range(4):
                g(f"v_cvt_pk_bf16_f32 v{16 + 4 * (j - 1) + i}, v{p + 2 * i}, v{p + 2 * i + 1}")
            g.lds(f"ds_write_b128 v7, {vr(16 + 4 * (j - 1), 4)} offset:{4096 * (j - 1)}", "xw")
    for i in range(4):
        g(f"v_cvt_pk_bf16_f32 v{44 + i}, v{56 + 2 * i}, v{57 + 2 * i}")
    g.lds(f"ds_write_b128 v7, {vr(44, 4)} offset:{4096 * 7}", "xw")


def xfrag_addrs(g, base):
    g(f"""v_and_b32 v4, 31, v0
    v_lshrrev_b32 v5, 5, v0
    s_lshl_b32 s{S_A}, s{S_KH}, 14
    s_lshl_b32 s{S_B}, s{S_ROT}, 12
    s_add_u32 s{S_A}, s{S_A}, s{S_B}
    s_lshl_b32 s{S_B}, s{S_KH}, 15
    s_add_u32 s{S_A}, s{S_A}, s{S_B}""")
    for i in range(4):
        g(f"""v_or_b32 v6, {2 * i}, v5
        v_xor_b32 v6, v6, v4
        v_lshlrev_b32 v6, 4, v6
        v_lshl_add_u32 v6, v5, 9, v6
        v_add_u32 v{base + i}, s{S_A}, v6
        v_xor_b32 v{base + 4 + i}, 0x8000, v{base + i}""")


def xfrag_next(g, base, q):
    m = (q ^ (q + 1)) << 12
    for i in range(8):
        g(f"v_xor_b32 v{base + i}, {m}, v{base + i}")


def step_soff(g, s, mul, base):
    g(f"""s_xor_b32 s{S_SOF}, s{S_ROT}, {s >> 2}
    s_lshl_b32 s{S_SOF}, s{S_SOF}, 2
    s_add_u32 s{S_SOF}, s{S_SOF}, {s & 3}
    s_mul_i32 s{S_SOF}, s{S_SOF}, {mul}
    s_add_u32 s{S_SOF}, s{S_SOF}, s{base}""")


def tr_lane(g):
    g("""v_bfe_u32 v4, v0, 2, 2
    v_lshrrev_b32 v5, 5, v0
    v_and_b32 v6, 3, v0
    v_lshlrev_b32 v6, 3, v6
    v_bfe_u32 v8, v0, 4, 1
    v_lshl_add_u32 v6, v8, 5, v6""")


def a_wave(g):
    o = g.o
    VQD, VQT, VXA = 116, 117, 104
    S_QB = S_C
    g(f"""s_lshl_b32 s{S_RING}, s{S_IDX}, 13
    s_add_u32 s{S_RING}, s{S_RING}, {LQR}
    s_xor_b32 s{S_PRING}, s{S_RING}, 0x4000
    v_lshrrev_b32 v8, 2, v0
    v_and_b32 v9, 3, v0
    v_lshlrev_b32 v{VQD}, 10, v8
    v_lshl_add_u32 v{VQD}, v9, 4, v{VQD}
    s_lshl_b32 s{S_QB}, s{S_KH}, 18
    s_lshl_b32 s{S_A}, s{S_CG}, 7
    s_add_u32 s{S_QB}, s{S_QB}, s{S_A}
    s_lshl_b32 s{S_A}, s{S_LO}, 6
    s_add_u32 s{S_QB}, s{S_QB}, s{S_A}""")

    def wq_dma(s):
        step_soff(g, s, 16384, S_QB)
        g(f"s_add_u32 m0, s{S_RING}, {1024 * (s & 7)}")
        g("s_nop 0")
        g.vmem(f"buffer_load_dwordx4 v{VQD}, {sr(R_WQ)}, s{S_SOF} offen lds", f"q{s}")

    lkv, lj = g.lab("akv"), g.lab("aj")
    g(f"s_cmp_eq_u32 s{S_CG}, 7\ns_cbranch_scc1 {lkv}")
    vm0 = list(g.vm)
    for s in range(8):
        wq_dma(s)
    g(f"s_branch {lj}\n{lkv}:")
    g(f"s_lshl_b32 s{S_A}, s{S_IDX}, 12\ns_add_u32 s{S_B}, s{S_A}, {LGR}")
    for R, lo in ((R_WK, 0), (R_WV, 16384)):
        g(f"s_add_u32 m0, s{S_B}, {lo}\ns_nop 0")
        for i in range(4):
            g(f"buffer_load_dwordx4 v{V_L16}, {sr(R)}, s{S_A} offen offset:{1024 * i} lds")
    g(f"{lj}:")
    W2R = 64

    def wq_reg(s):
        step_soff(g, s, 16384, S_QB)
        g.vmem(f"buffer_load_dwordx4 {vr(W2R + 4 * (s - 8), 4)}, v{VQD}, {sr(R_WQ)}, s{S_SOF} offen", f"q{s}")

    layernorm(g, [lambda s=s: wq_reg(s) for s in range(8, 16)])
    l2, l3 = g.lab("aj2"), g.lab("aj3")
    g(f"s_cmp_lg_u32 s{S_CG}, 7\ns_cbranch_scc1 {l2}")
    g(f"s_waitcnt vmcnt(8)\n{l2}:")
    g.wlg0()
    g.stamp(2)
    g("s_barrier")
    g("s_setprio 2")
    g.stamp(3)
    g(f"s_cbranch_scc1 {l3}")
    keep = list(g.vm)
    for s in range(8):
        wq_dma(s)
    g(f"s_waitcnt vmcnt(0)\n{l3}:")
    g.vm = keep
    xfrag_addrs(g, VXA)
    tr_lane(g)
    g(f"""v_lshl_add_u32 v4, v5, 3, v4
    v_lshl_add_u32 v{VQT}, v4, 6, v6
    v_add_u32 v{VQT}, s{S_RING}, v{VQT}
    s_lshl_b32 s{S_A}, s{S_LO}, 2
    v_add_u32 v{V_CNTP}, s{S_A}, v{V_CNT}""")
    A0, A1, WF, XF = 128, 144, 160, 192
    g(f"v_add_u32 v4, s{S_RING}, v{V_L16}")
    for half in range(2):
        if half == 0:
            g.wvm("q7")
        for i in range(8):
            g.lds(f"ds_read_b64_tr_b16 {vr(WF + 4 * i, 2)}, v{VQT} offset:{1024 * i}", f"w{i}")
            g.lds(f"ds_read_b64_tr_b16 {vr(WF + 4 * i + 2, 2)}, v{VQT} offset:{1024 * i + 256}", f"w{i}")
        for i in range(8):
            s = 8 * half + i
            if i == 4:
                xfrag_next(g, VXA, s // 4 - 1)
            for rt in range(2):
                g.lds(f"ds_read_b128 {vr(XF + 8 * i + 4 * rt, 4)}, v{VXA + 4 * rt + (s & 3)} offset:{1024 * (s & 3)}", f"x{i}")
        if half == 0:
            xfrag_next(g, VXA, 1)
        for i in range(8):
            g.wlg(f"w{i}", f"x{i}")
            first = half == 0 and i == 0
            g(mfma32(A0, WF + 4 * i, XF + 8 * i, "0" if first else None))
            g(mfma32(A1, WF + 4 * i, XF + 8 * i + 4, "0" if first else None))
            if half == 0:
                g.wvm(f"q{8 + i}")
                g.lds(f"ds_write_b128 v4, {vr(W2R + 4 * i, 4)} offset:{1024 * i}", "qw")
    g(f"v_add_u32 v5, s{S_PRING}, v{V_L16}")
    g(f"""s_lshl_b32 s{S_A}, s{S_KH}, 12
    s_lshl_b32 s{S_B}, s{S_LO}, 11
    s_add_u32 s{S_A}, s{S_A}, s{S_B}
    s_add_u32 s{S_A}, s{S_A}, {LQF}
    v_add_u32 v6, s{S_A}, v{V_L16}
    v_add_u32 v7, {LQF}, v{V_L16}
    s_nop 7""")
    for i in range(4):
        g.lds(f"ds_write_b128 v4, {vr(A1 + 4 * i, 4)} offset:{1024 * i}", "e")
    g.signal(V_CNTP, C_Q1)
    g.spin_lds(V_CNTP, C_Q1, 2, 0)
    for i in range(4):
        g.lds(f"ds_read_b128 {vr(WF + 4 * i, 4)}, v5 offset:{1024 * i}", f"e{i}")
    for i in range(4):
        g.wlg(f"e{i}")
        for j in range(4):
            g(f"v_add_f32 v{A0 + 4 * i + j}, v{A0 + 4 * i + j}, v{WF + 4 * i + j}")
    for i in range(8):
        g(f"v_cvt_pk_bf16_f32 v{A1 + i}, v{A0 + 2 * i}, v{A0 + 2 * i + 1}")
    g.lds(f"ds_write_b128 v6, {vr(A1, 4)}", "e")
    g.lds(f"ds_write_b128 v6, {vr(A1 + 4, 4)} offset:1024", "e")
    g.signal(V_CNT, C_Q2)
    Q, S0, S1, KV, ACC = 16, 48, 64, 80, 128
    VV, VP, VPL = 116, 117, 118
    g.wlg0()
    for i in range(128):
        g(f"v_mov_b32 v{ACC + i}, 0")
    for st in range(3):
        for i in range(8):
            g(f"v_mov_b32 v{KV + 12 * st + 4 + i}, 0")
    g("s_mov_b32 exec_lo, 0x00110000\ns_mov_b32 exec_hi, 0x00110000")
    for st in range(3):
        for i in range(8):
            g(f"v_mov_b32 v{KV + 12 * st + 4 + i}, 0x3f803f80")
    g(f"""s_mov_b64 exec, -1
    v_and_b32 v4, 15, v0
    v_lshrrev_b32 v5, 5, v0
    v_lshl_add_u32 v4, v5, 4, v4
    v_lshlrev_b32 v{VV}, 4, v4
    s_mul_i32 s{S_A}, s{S_IDX}, 2304
    v_add_u32 v{VP}, s{S_A}, v{V_L16}
    v_lshlrev_b32 v4, 2, v0
    v_add_u32 v{VPL}, s{S_A}, v4
    v_and_b32 v4, 7, v0
    v_lshlrev_b32 v4, 2, v4
    s_lshl_b32 s{S_B}, s{S_IDX}, 5
    s_lshl_b32 s{S_C}, s{S_IDX}, 15""")
    g.spin_lds(V_CNT, C_Q2, 4, 0)
    for q in range(8):
        g.lds(f"ds_read_b128 {vr(Q + 4 * q, 4)}, v7 offset:{1024 * q}", "q")
    g.stamp(4)
    l, d = g.lab("kvp"), g.lab("kvd")
    g(f"""s_mov_b32 s{S_SPIN}, {SPIN}
    {l}:
    buffer_load_dword v{V_T}, v4, {sr(R_DBG)}, s{S_B} offen sc1
    s_waitcnt vmcnt(0)
    v_cmp_ne_u32 vcc, 0, v{V_T}
    s_cmp_eq_u64 vcc, exec
    s_cbranch_scc1 {d}
    s_sleep {o.kvsleep}
    s_sub_u32 s{S_SPIN}, s{S_SPIN}, 1
    s_cmp_lg_u32 s{S_SPIN}, 0
    s_cbranch_scc1 {l}
    {d}:""")
    g.vm = []
    g.stamp(5)

    def kset(kt):
        return KV + 12 * (kt % 3)

    def load_k(kt):
        g.vmem(f"buffer_load_dwordx4 {vr(kset(kt), 4)}, v{V_L16}, {sr(R_WS)}, s{S_C} offen offset:{2048 * (kt & 1)} sc1", f"k{kt}")

    def load_v(kt):
        g(f"s_mov_b64 exec, {sr(S_MLO, 2)}")
        for j in range(2):
            g.vmem(f"buffer_load_dwordx4 {vr(kset(kt) + 4 + 4 * j, 4)}, v{VV}, {sr(R_WS)}, s{S_C} offen offset:{2048 * (kt & 1) + 1024 + 512 * j} sc1", f"v{kt}")
        g("s_mov_b64 exec, -1")
        if kt & 1:
            g(f"s_add_u32 s{S_C}, s{S_C}, 4096")

    for kt in range(2):
        load_k(kt)
        load_v(kt)
    g.wlg0()
    g.wvm("k0")
    g(mfma32(S0, kset(0), Q, "0"))
    g("s_nop 7\ns_nop 4")

    def part_writes(q):
        a, b = (VP, VPL) if q < 4 else (VP + 3, VPL + 3)
        off = 9216 * (q & 3)
        return [f"ds_write_b128 v{a}, {vr(ACC + 16 * q, 4)} offset:{off}",
                f"ds_write_b128 v{a}, {vr(ACC + 16 * q + 4, 4)} offset:{off + 1024}",
                f"ds_write_b32 v{b}, v{ACC + 16 * q + 8} offset:{off + 2048}"]

    g(f"v_add_u32 v{VP + 3}, {4 * 9216}, v{VP}\nv_add_u32 v{VPL + 3}, {4 * 9216}, v{VPL}")
    NT = 128
    for t in range(NT):
        kt, q = divmod(t, 8)
        cur, nxt = (S0, S1) if t % 2 == 0 else (S1, S0)
        extra = {}

        def at(e, f):
            extra.setdefault(e, []).append(f)

        if t > 0:
            ktp, qp = divmod(t - 1, 8)
            at(1, lambda ktp=ktp, qp=qp: g(smf(ACC + 16 * qp, kset(ktp) + 8, nxt + 8)))
        if t + 1 < NT:
            ktn, qn = divmod(t + 1, 8)
            if qn == 0:
                at(3, lambda ktn=ktn: g.wvm(f"k{ktn}"))
            at(4, lambda ktn=ktn, qn=qn: g(mfma32(nxt, kset(ktn), Q + 4 * qn, "0")))
        if q == 0:
            at(9, lambda: g.wvm(f"v{kt}"))
        at(10, lambda: g(smf(ACC + 16 * q, kset(kt) + 4, cur)))
        if q == 1 and kt + 2 < 16:
            at(6, lambda: load_k(kt + 2))
            at(12, lambda: load_v(kt + 2))
        if q == 0 and kt in (4, 8, 12):
            at(0, lambda: g.stamp({4: 7, 8: 8, 12: 10}[kt]))
        if kt == 14 and q == 4:
            at(6, lambda: g.lds(f"ds_read_b64 v[4:5], v{V_CNT} offset:{C_G1}", "g1"))
        if kt == 14 and q == 6:
            def chk():
                ok = g.lab("g1ok")
                g.wlg0()
                g(f"""v_add_u32 v4, v4, v5
                s_nop 0
                v_readfirstlane_b32 s{S_T}, v4
                s_cmp_ge_u32 s{S_T}, 4
                s_cbranch_scc1 {ok}""")
                g.spin_lds(V_CNT, C_G1, 2)
                g.spin_lds(V_CNT, C_G1 + 4, 2)
                g(f"{ok}:")
            at(13, chk)
        if kt == 15 and q >= 2:
            for e, w in zip((2, 7, 12), part_writes(q - 2)):
                at(e, lambda w=w: g(w))
        for e in range(16):
            g(f"v_exp_f32 v{cur + e}, v{cur + e}")
            for f in extra.get(e, []):
                f()
    g("s_nop 1")
    g(smf(ACC + 16 * 7, kset(15) + 8, S1 + 8))
    for w in part_writes(6):
        g(w)
    g("s_nop 7\ns_nop 2")
    for w in part_writes(7):
        g(w)
    g.stamp(6)
    g.wlg0()


def g_wave(g):
    o = g.o
    VD, VT, VXA = 116, 119, 104
    S_WB = S_C
    g(f"""s_mul_i32 s{S_RING}, s{S_IDX}, 12288
    s_add_u32 s{S_RING}, s{S_RING}, {LGR}
    s_xor_b32 s{S_A}, s{S_IDX}, 2
    s_mul_i32 s{S_PRING}, s{S_A}, 12288
    s_add_u32 s{S_PRING}, s{S_PRING}, {LGR}
    s_mul_i32 s{S_WB}, s{S_KH}, {256 * 2752}
    s_mul_i32 s{S_A}, s{S_CG}, 384
    s_add_u32 s{S_WB}, s{S_WB}, s{S_A}
    s_mul_i32 s{S_A}, s{S_LO}, 192
    s_add_u32 s{S_WB}, s{S_WB}, s{S_A}
    s_mov_b32 s{S_A}, 0x15555556""")
    for i in range(3):
        g(f"""v_add_u32 v8, {64 * i}, v0
        v_mul_hi_u32 v9, v8, s{S_A}
        v_mul_u32_u24 v10, 12, v9
        v_sub_u32 v10, v8, v10
        v_mul_u32_u24 v9, 2752, v9
        v_lshl_add_u32 v{VD + i}, v10, 4, v9""")
        if i:
            g(f"v_subrev_u32 v{VD + i}, {1024 * i}, v{VD + i}")
    g(f"""v_mov_b32 v8, 0
    v_lshl_add_u32 v9, v0, 2, v{V_CNT}
    ds_write_b32 v9, v8""")

    def w1_dma(s):
        step_soff(g, s, 16 * 2752, S_WB)
        g(f"s_add_u32 m0, s{S_RING}, {3072 * (s & 3)}\ns_nop 0")
        for i in range(3):
            g.vmem(f"buffer_load_dwordx4 v{VD + i}, {sr(R_W1)}, s{S_SOF} offen offset:{1024 * i} lds", f"w{s}")

    layernorm(g)
    lkv, lj = g.lab("gkv"), g.lab("gj")
    g(f"s_cmp_eq_u32 s{S_CG}, 7\ns_cbranch_scc1 {lkv}")
    NPRE = o.npre
    for s in range(NPRE):
        w1_dma(s)
    g.wlg0()
    g.stamp(2)
    g("s_barrier")
    g.stamp(3)
    g(f"s_branch {lj}\n{lkv}:")
    keep = list(g.vm)
    g.vm = []
    g(f"""v_and_b32 v4, 15, v0
    v_lshrrev_b32 v5, 4, v0
    s_lshl_b32 s{S_A}, s{S_LO}, 4
    v_add_u32 v6, s{S_A}, v4
    s_lshl_b32 s{S_B}, s{S_KH}, 15
    v_xor_b32 v8, v6, v5
    v_lshlrev_b32 v8, 4, v8
    v_lshl_add_u32 v8, v5, 9, v8
    v_add_u32 v8, s{S_B}, v8
    v_xor_b32 v9, 64, v8
    v_add_u32 v9, 2048, v9
    v_bfe_u32 v10, v0, 2, 2
    v_lshl_add_u32 v10, v5, 3, v10
    v_lshlrev_b32 v10, 5, v10
    v_and_b32 v11, 3, v0
    v_lshl_add_u32 v10, v11, 3, v10
    v_add_u32 v10, {LGR}, v10
    v_and_b32 v11, 1, v5
    v_lshrrev_b32 v12, 1, v5
    v_lshl_add_u32 v13, v11, 5, v6
    v_lshlrev_b32 v13, 4, v13
    v_lshl_add_u32 v13, v12, 3, v13
    v_lshl_add_u32 v14, v12, 4, v4
    v_lshlrev_b32 v14, 4, v14
    v_lshl_add_u32 v14, v11, 3, v14
    s_lshl_b32 s{S_A}, s{S_LO}, 9
    s_add_u32 s{S_A}, s{S_A}, 1024
    v_add_u32 v14, s{S_A}, v14
    s_lshl_b32 s{S_D}, s{S_RB}, 12
    s_lshl_b32 s{S_A}, s{S_KH}, 11
    s_add_u32 s{S_D}, s{S_D}, s{S_A}
    s_setprio 3""")
    g.wlg0()
    g.stamp(2)
    g("s_barrier")
    g.stamp(3)
    FR = 128
    DK, DV = 16, 20

    def kv_reads(s):
        b = FR + 12 * (s % 3)
        g.lds(f"ds_read_b128 {vr(b, 4)}, v{8 + (s & 1)} offset:{4096 * (s >> 1)}", f"s{s}")
        for j in range(2):
            g.lds(f"ds_read_b64_tr_b16 {vr(b + 4 + 4 * j, 2)}, v10 offset:{1024 * s + 16384 * j}", f"s{s}")
            g.lds(f"ds_read_b64_tr_b16 {vr(b + 6 + 4 * j, 2)}, v10 offset:{1024 * s + 16384 * j + 128}", f"s{s}")

    kv_reads(0)
    kv_reads(1)
    for s in range(16):
        if s + 2 < 16:
            kv_reads(s + 2)
        g.wlg(f"s{s}")
        b = FR + 12 * (s % 3)
        g(f"v_mfma_f32_16x16x32_bf16 {vr(DK, 4)}, {vr(b + 4, 4)}, {vr(b, 4)}, {vr(DK, 4) if s else 0}")
        g(f"v_mfma_f32_16x16x32_bf16 {vr(DV, 4)}, {vr(b, 4)}, {vr(b + 8, 4)}, {vr(DV, 4) if s else 0}")
    g("s_nop 6")
    for i in range(4):
        g(f"v_mul_f32 v{DK + i}, {f32(0.25 / L2E)}, v{DK + i}")
    for i in range(4):
        g(f"v_mul_f32 v{DV + i}, {f32(-1 / L2E)}, v{DV + i}")
    g(f"""v_cvt_pk_bf16_f32 v{DK}, v{DK}, v{DK + 1}
    v_cvt_pk_bf16_f32 v{DK + 1}, v{DK + 2}, v{DK + 3}
    v_cvt_pk_bf16_f32 v{DV}, v{DV}, v{DV + 1}
    v_cvt_pk_bf16_f32 v{DV + 1}, v{DV + 2}, v{DV + 3}
    buffer_store_dwordx2 {vr(DK, 2)}, v13, {sr(R_WS)}, s{S_D} offen sc1
    buffer_store_dwordx2 {vr(DV, 2)}, v14, {sr(R_WS)}, s{S_D} offen sc1
    s_waitcnt vmcnt(0)""")
    nl = g.lab("kvnl")
    g(f"""s_mov_b64 exec, 1
    ds_add_rtn_u32 v{V_T}, v{V_CNT}, v{V_ONE} offset:{C_KV}
    s_waitcnt lgkmcnt(0)
    v_readfirstlane_b32 s{S_T}, v{V_T}
    s_cmp_lg_u32 s{S_T}, 3
    s_cbranch_scc1 {nl}
    s_lshl_b32 s{S_A}, s{S_RB}, 2
    buffer_store_dword v{V_ONE}, off, {sr(R_DBG)}, s{S_A} sc1
    {nl}:
    s_mov_b64 exec, -1""")
    g.spin_lds(V_CNT, C_KV, 4)
    for s in range(NPRE):
        w1_dma(s)
    g(f"{lj}:\ns_setprio 3")
    g.vm = keep
    g(f"s_lshl_b32 s{S_D}, s{S_RB}, 8\ns_add_u32 s{S_D}, s{S_D}, {FOFF}")
    g.vmem(f"buffer_load_dword v115, off, {sr(R_WS)}, s{S_D} offset:128 sc1", "ep")
    for s in range(NPRE, 4):
        w1_dma(s)
    xfrag_addrs(g, VXA)
    tr_lane(g)
    g(f"""v_lshl_add_u32 v4, v5, 3, v4
    v_mul_u32_u24 v4, 192, v4
    v_add3_u32 v{VT}, v4, v6, s{S_RING}
    s_lshl_b32 s{S_A}, s{S_LO}, 2
    v_add_u32 v{V_CNTP}, s{S_A}, v{V_CNT}""")
    A0, A1 = 128, 176

    def fr(s):
        return 16 + 20 * (s & 1)

    def w1_reads(s):
        if s and (s & 3) == 0:
            xfrag_next(g, VXA, s // 4 - 1)
        g.wvm(f"w{s}")
        b = fr(s)
        for rt in range(2):
            g.lds(f"ds_read_b128 {vr(b + 12 + 4 * rt, 4)}, v{VXA + 4 * rt + (s & 3)} offset:{1024 * (s & 3)}", f"r{s}")
        for ct in range(3):
            for j in range(2):
                g.lds(f"ds_read_b64_tr_b16 {vr(b + 4 * ct + 2 * j, 2)}, v{VT} offset:{3072 * (s & 3) + 64 * ct + 768 * j}", f"r{s}")

    w1_reads(0)
    for s in range(16):
        g.wlg(f"r{s}")
        if s + 4 < 16:
            w1_dma(s + 4)
        if s + 1 < 16:
            w1_reads(s + 1)
        b = fr(s)
        g("s_setprio 0")
        for ct in range(3):
            g(mfma32(A1 + 16 * ct, b + 4 * ct, b + 16, None if s else "0"))
        for ct in range(3):
            g(mfma32(A0 + 16 * ct, b + 4 * ct, b + 12, None if s else "0"))
        g("s_setprio 3")
    g.stamp(4)
    g(f"""v_mov_b32 v8, -1
    v_mov_b32 v9, -1
    v_mov_b32 v10, -1
    v_mov_b32 v11, -1
    s_lshl_b32 s{S_A}, s{S_RB}, 16
    s_lshl_b32 s{S_B}, s{S_CG}, 12
    s_add_u32 s{S_A}, s{S_A}, s{S_B}
    s_lshl_b32 s{S_B}, s{S_IDX}, 10
    s_add_u32 s{S_A}, s{S_A}, s{S_B}
    s_add_u32 s{S_A}, s{S_A}, {OOFF}
    s_add_u32 s{S_B}, s{S_A}, 32768
    buffer_store_dwordx4 v[8:11], v{V_L16}, {sr(R_WS)}, s{S_A} offen sc1
    buffer_store_dwordx4 v[8:11], v{V_L16}, {sr(R_WS)}, s{S_B} offen sc1
    v_add_u32 v4, s{S_RING}, v{V_L16}
    v_add_u32 v5, s{S_PRING}, v{V_L16}""")
    for i in range(12):
        g.lds(f"ds_write_b128 v4, {vr(A1 + 4 * i, 4)} offset:{1024 * i}", "e")
    g.signal(V_CNTP, C_G1)
    g.spin_lds(V_CNTP, C_G1, 2)
    for i in range(12):
        g.lds(f"ds_read_b128 {vr(A1 + 4 * i, 4)}, v5 offset:{1024 * i}", f"e{i}")
    g(f"""s_mul_i32 s{S_A}, s{S_RB}, {HRB}
    s_mul_i32 s{S_B}, s{S_CG}, {6 * 4096}
    s_add_u32 s{S_A}, s{S_A}, s{S_B}
    s_mul_i32 s{S_B}, s{S_LO}, {3 * 4096}
    s_add_u32 s{S_A}, s{S_A}, s{S_B}
    s_lshl_b32 s{S_B}, s{S_KH}, 10
    s_add_u32 s{S_A}, s{S_A}, s{S_B}
    s_add_u32 s{S_A}, s{S_A}, {HOFF}""")
    for f in range(6):
        a, t = A0 + 8 * f, A1 + 8 * f
        g.wlg(f"e{2 * f + 1}")
        for i in range(0, 8, 2):
            g(f"v_pk_add_f32 {vr(a + i, 2)}, {vr(a + i, 2)}, {vr(t + i, 2)}")
        for i in range(8):
            g(f"v_exp_f32 v{t + i}, v{a + i}")
        for i in range(0, 8, 2):
            g(f"v_pk_add_f32 {vr(t + i, 2)}, {vr(t + i, 2)}, 1.0 op_sel_hi:[1,0]")
        for i in range(8):
            g(f"v_rcp_f32 v{t + i}, v{t + i}")
        for i in range(0, 8, 2):
            g(f"v_pk_mul_f32 {vr(a + i, 2)}, {vr(a + i, 2)}, {vr(t + i, 2)}")
        for i in range(4):
            g(f"v_cvt_pk_bf16_f32 v{16 + 4 * f + i}, v{a + 2 * i}, v{a + 2 * i + 1}")
        g(f"buffer_store_dwordx4 {vr(16 + 4 * f, 4)}, v{V_L16}, {sr(R_WS)}, s{S_A} offen offset:{2048 * (f & 1)} sc1")
        if f & 1:
            g(f"s_add_u32 s{S_A}, s{S_A}, 4096")
    g.signal(V_CNTP, C_G1B)
    g.wvm0()
    g.stamp(5)
    if o.gskip:
        g(f"v_mov_b32 v123, 0\ns_mov_b32 s{S_K2}, 0x7fffffff")
        return
    nl = g.lab("hnl")
    g("v_add_u32 v115, 0x9e3779b9, v115")
    g(f"""s_mov_b64 exec, 1
    ds_add_rtn_u32 v{V_T}, v{V_CNT}, v{V_ONE} offset:{C_H}
    s_waitcnt lgkmcnt(0)
    v_readfirstlane_b32 s{S_E}, v{V_T}
    s_lshl_b32 s{S_A}, s{S_CG}, 2
    s_add_u32 s{S_A}, s{S_A}, s{S_D}
    s_cmp_lg_u32 s{S_E}, 3
    s_cbranch_scc1 {nl}
    buffer_store_dword v115, off, {sr(R_WS)}, s{S_A} sc1
    {nl}:
    s_mov_b64 exec, -1""")
    g.spin_lds(V_CNTP, C_G1B, 2)
    VT0, VT1 = 118, 119
    g(f"""v_lshrrev_b32 v4, 3, v0
    v_and_b32 v5, 7, v0
    v_bfe_u32 v6, v0, 4, 1
    v_lshlrev_b32 v6, 2, v6
    v_xor_b32 v5, v5, v6
    v_lshlrev_b32 v{VD}, 10, v4
    v_lshl_add_u32 v{VD}, v5, 4, v{VD}
    v_add_u32 v{VD + 1}, {8192 - 1024}, v{VD}""")
    tr_lane(g)
    g(f"""v_lshrrev_b32 v8, 1, v4
    v_xor_b32 v8, s{S_KH}, v8
    v_lshl_add_u32 v6, v8, 6, v6
    v_lshl_add_u32 v4, v5, 2, v4
    v_lshl_add_u32 v4, v4, 7, v6
    v_add_u32 v{VT0}, s{S_RING}, v4
    v_xor_b32 v4, 64, v4
    v_add_u32 v{VT1}, s{S_RING}, v4
    s_mul_i32 s{S_WB}, s{S_IDX}, {352 * 1024}
    s_lshl_b32 s{S_A}, s{S_CG}, 7
    s_add_u32 s{S_WB}, s{S_WB}, s{S_A}
    s_xor_b32 s{S_A}, s{S_IDX}, 1
    s_mul_i32 s{S_PRING}, s{S_A}, 12288
    s_add_u32 s{S_PRING}, s{S_PRING}, {LGR}
    s_lshl_b32 s{S_A}, s{S_KH}, 2
    v_add_u32 v{V_CNTP}, s{S_A}, v{V_CNT}
    s_lshl_b32 s{S_A}, s{S_LO}, 10
    v_add_u32 v120, s{S_A}, v{V_L16}
    v_xor_b32 v121, 1024, v120
    s_mul_i32 s{S_B}, s{S_IDX}, {11 * 4096}""")

    def w_dma(R, s, tag):
        g(f"s_add_u32 m0, s{S_RING}, {2048 * (s % 6)}\ns_nop 0")
        for i in range(2):
            g.vmem(f"buffer_load_dwordx4 v{VD + i}, {sr(R)}, s{S_WB} offen offset:{1024 * i} lds", tag)
        g(f"s_add_u32 s{S_WB}, s{S_WB}, 16384")

    for s in range(6):
        w_dma(R_W2, s, f"w{s}")
    XR = 96
    g(f"""v_and_b32 v4, 31, v0
    v_lshrrev_b32 v5, 5, v0
    v_lshlrev_b32 v4, 10, v4
    v_lshl_add_u32 v122, v5, 3, v4
    v_lshl_add_u32 v123, v5, 4, v4
    s_lshl_b32 s{S_K2}, s{S_RB}, 16
    s_lshl_b32 s{S_A}, s{S_LO}, 15
    s_add_u32 s{S_K2}, s{S_K2}, s{S_A}
    s_lshl_b32 s{S_A}, s{S_CG}, 7
    s_add_u32 s{S_K2}, s{S_K2}, s{S_A}
    s_lshl_b32 s{S_A}, s{S_KH}, 6
    s_add_u32 s{S_K2}, s{S_K2}, s{S_A}""")
    for i in range(4):
        g.vmem(f"buffer_load_dwordx2 {vr(XR + 2 * i, 2)}, v122, {sr(R_X)}, s{S_K2} offen offset:{16 * i}", "xr")
    l, d, oth, j2 = g.lab("hp"), g.lab("hd"), g.lab("ho"), g.lab("hj")
    g(f"""s_cmp_lg_u32 s{S_E}, 3
    s_cbranch_scc1 {oth}
    v_and_b32 v4, 7, v0
    v_lshlrev_b32 v4, 2, v4
    s_mov_b32 s{S_SPIN}, {SPIN}
    {l}:
    buffer_load_dword v{V_T}, v4, {sr(R_WS)}, s{S_D} offen sc1
    s_waitcnt vmcnt(0)
    v_cmp_eq_u32 vcc, v115, v{V_T}
    s_cmp_eq_u64 vcc, exec
    s_cbranch_scc1 {d}
    s_sleep {o.hsleep}
    s_sub_u32 s{S_SPIN}, s{S_SPIN}, 1
    s_cmp_lg_u32 s{S_SPIN}, 0
    s_cbranch_scc1 {l}
    {d}:""")
    g.signal(V_CNT, C_H2)
    g(f"""s_cmp_lg_u32 s{S_CG}, 0
    s_cbranch_scc1 {j2}
    s_mov_b64 exec, 1
    buffer_store_dword v115, off, {sr(R_WS)}, s{S_D} offset:128 sc1
    s_mov_b64 exec, -1
    s_branch {j2}
    {oth}:""")
    g.spin_lds(V_CNT, C_H2, 1, 4)
    g(f"{j2}:")
    g.lg = ["sig"]
    g.stamp(6)
    HD = 6
    HF, WFb = 128, 80
    B0, B1 = 16, 48

    def h_load(s):
        for rt in range(2):
            g.vmem(f"buffer_load_dwordx4 {vr(HF + 8 * (s % HD) + 4 * rt, 4)}, v{120 + rt}, {sr(R_H)}, s{S_B} offen offset:{2048 * (s & 1)} sc1", f"h{s}")
        if s & 1:
            g(f"s_add_u32 s{S_B}, s{S_B}, 4096")

    def w_reads(s, dst):
        for ct in range(2):
            for j in range(2):
                g.lds(f"ds_read_b64_tr_b16 {vr(dst + 4 * ct + 2 * j, 2)}, v{VT0 + ct} offset:{2048 * (s % 6) + 1024 * j}", f"r{s}")

    for s in range(HD):
        h_load(s)
    g.wvm("w0")
    w_reads(0, WFb)
    for s in range(22):
        g.wlg(f"r{s}")
        if s + 6 < 22:
            w_dma(R_W2, s + 6, f"w{s + 6}")
        if s + 1 < 22:
            g.wvm(f"w{s + 1}", f"h{s}")
            w_reads(s + 1, WFb + 8 * ((s + 1) & 1))
        g.wvm(f"h{s}")
        wb, hb = WFb + 8 * (s & 1), HF + 8 * (s % HD)
        g("s_setprio 0")
        for ct in range(2):
            g(mfma32(B1 + 16 * ct, wb + 4 * ct, hb + 4, None if s else "0"))
        for ct in range(2):
            g(mfma32(B0 + 16 * ct, wb + 4 * ct, hb, None if s else "0"))
        g("s_setprio 3")
        if s + HD < 22:
            h_load(s + HD)
    g.stamp(7)
    g(f"""v_add_u32 v4, s{S_RING}, v{V_L16}
    v_add_u32 v5, s{S_PRING}, v{V_L16}
    s_nop 7
    s_nop 1""")
    for i in range(8):
        g.lds(f"ds_write_b128 v4, {vr(B1 + 4 * i, 4)} offset:{1024 * i}", "e")
    g.signal(V_CNTP, C_G2)
    g.spin_lds(V_CNTP, C_G2, 2)
    for i in range(8):
        g.lds(f"ds_read_b128 {vr(B1 + 4 * i, 4)}, v5 offset:{1024 * i}", f"e{i}")
    g.wlg0()
    g.signal(V_CNTP, C_G2B)
    g(f"s_mov_b32 s{S_A}, {f32(-1 / L2E)}")
    for i in range(0, 32, 2):
        g(f"v_pk_add_f32 {vr(B0 + i, 2)}, {vr(B0 + i, 2)}, {vr(B1 + i, 2)}")
    for i in range(8):
        g(f"v_lshlrev_b32 v{B1 + 2 * i}, 16, v{XR + i}")
        g(f"v_and_b32 v{B1 + 2 * i + 1}, 0xffff0000, v{XR + i}")
    for i in range(16):
        g(f"v_fma_f32 v{B0 + i}, v{B0 + i}, s{S_A}, v{B1 + i}")
    for i in range(16, 32):
        g(f"v_mul_f32 v{B0 + i}, s{S_A}, v{B0 + i}")
    g.spin_lds(V_CNTP, C_G2B, 2)
    g(f"""s_lshl_b32 s{S_WB}, s{S_KH}, 18
    s_lshl_b32 s{S_A}, s{S_CG}, 7
    s_add_u32 s{S_WB}, s{S_WB}, s{S_A}""")
    g.vm = []
    for s in range(6):
        w_dma(R_WO, s, f"w{s}")
    for s in range(16):
        g.wvm(f"w{s}")
        w_reads(s, 128 + 8 * s)
        if s + 6 < 16:
            g.wlg0()
            w_dma(R_WO, s + 6, f"w{s + 6}")
    g.wlg0()
    g.stamp(8)


def finalize(g):
    T = 48
    g(f"""s_mul_i32 s{S_A}, s{S_W}, 9216
    v_add_u32 v4, s{S_A}, v{V_L16}
    v_lshlrev_b32 v5, 2, v0
    v_add_u32 v5, s{S_A}, v5
    s_lshl_b32 s{S_D}, s{S_RB}, 16
    s_lshl_b32 s{S_B}, s{S_CG}, 12
    s_add_u32 s{S_D}, s{S_D}, s{S_B}
    s_lshl_b32 s{S_B}, s{S_IDX}, 10
    s_add_u32 s{S_D}, s{S_D}, s{S_B}
    s_lshr_b32 s{S_B}, s{S_W}, 2
    s_lshl_b32 s{S_B}, s{S_B}, 15
    s_add_u32 s{S_D}, s{S_D}, s{S_B}
    s_add_u32 s{S_D}, s{S_D}, {OOFF}
    s_mov_b32 s{S_A}, {f32(2.0 ** -40)}
    s_mov_b32 s{S_B}, {f32(2.0 ** 40)}
    s_barrier""")
    g.stamp(9)
    for a in range(4):
        g.lds(f"ds_read_b32 v{T + 40 + a}, v5 offset:{2304 * a + 2048}", "l")
    for a in range(4):
        for j in range(2):
            g.lds(f"ds_read_b128 {vr(T + (8 + 8 * a if a else 0) + 4 * j, 4)}, v4 offset:{2304 * a + 1024 * j}", f"p{a}")
    g.wlg("l")
    g(f"""v_add_f32 v{T + 40}, v{T + 40}, v{T + 41}
    v_add_f32 v{T + 42}, v{T + 42}, v{T + 43}
    v_add_f32 v{T + 8}, v{T + 40}, v{T + 42}
    v_cmp_lt_f32 vcc, s{S_A}, v{T + 8}
    v_cmp_gt_f32 s[98:99], s{S_B}, v{T + 8}""")
    for a in range(1, 4):
        g.wlg(f"p{a}")
        for i in range(0, 8, 2):
            g(f"v_pk_add_f32 {vr(T + i, 2)}, {vr(T + i, 2)}, {vr(T + 8 + 8 * a + i, 2)}")
    g(f"""s_and_b64 vcc, vcc, s[98:99]
    s_cmp_eq_u64 vcc, exec
    {"s_cbranch_scc0 L_slow" if not g.o.forceslow else "s_branch L_slow"}
    L_norm:
    v_rcp_f32 v{T + 8}, v{T + 8}
    s_nop 0""")
    for i in range(8):
        g(f"v_mul_f32 v{T + i}, v{T + i}, v{T + 8}")
    for i in range(4):
        g(f"v_cvt_pk_bf16_f32 v{T + 12 + i}, v{T + 2 * i}, v{T + 2 * i + 1}")
    g(f"""v_min_u32 v{T + 12}, 0xfffffffe, v{T + 12}
    buffer_store_dwordx4 {vr(T + 12, 4)}, v{V_L16}, {sr(R_WS)}, s{S_D} offen sc1""")


def slow_path(g):
    T, S, Q, K, V, M = 48, 64, 80, 84, 88, 96
    l1, l2 = g.lab("s1"), g.lab("s2")
    g(f"""L_slow:
    s_lshl_b32 s{S_A}, s{S_W}, 10
    s_add_u32 s{S_A}, s{S_A}, {LQF}
    v_add_u32 v4, s{S_A}, v{V_L16}
    ds_read_b128 {vr(Q, 4)}, v4
    v_and_b32 v4, 15, v0
    v_lshrrev_b32 v5, 5, v0
    v_lshl_add_u32 v4, v5, 4, v4
    v_lshlrev_b32 v4, 4, v4
    v_mov_b32 v{M}, 0xff800000""")
    for i in range(16):
        g(f"v_mov_b32 v{T + i}, 0")
    for i in range(8):
        g(f"v_mov_b32 v{V + i}, 0x3f803f80")
    g(f"""s_mov_b32 s{S_A}, {KVOFF}
    s_waitcnt vmcnt(0) lgkmcnt(0)
    {l1}:
    buffer_load_dwordx4 {vr(K, 4)}, v{V_L16}, {sr(R_WS)}, s{S_A} offen sc1
    s_waitcnt vmcnt(0)
    {mfma32(S, K, Q, "0")}
    s_nop 15""")
    for i in range(0, 16, 2):
        g(f"v_max3_f32 v{M}, v{M}, v{S + i}, v{S + i + 1}")
    g(f"""s_add_u32 s{S_A}, s{S_A}, 2048
    s_cmp_lt_u32 s{S_A}, {KVOFF + 64 * 2048}
    s_cbranch_scc1 {l1}
    v_mov_b32 v{M + 1}, v{M}
    s_nop 1
    v_permlane32_swap_b32 v{M}, v{M + 1}
    s_nop 1
    v_max_f32 v{M}, v{M}, v{M + 1}
    s_mov_b32 s{S_A}, {KVOFF}
    {l2}:
    buffer_load_dwordx4 {vr(K, 4)}, v{V_L16}, {sr(R_WS)}, s{S_A} offen sc1
    s_mov_b64 exec, {sr(S_MLO, 2)}
    buffer_load_dwordx4 {vr(V, 4)}, v4, {sr(R_WS)}, s{S_A} offen offset:1024 sc1
    buffer_load_dwordx4 {vr(V + 4, 4)}, v4, {sr(R_WS)}, s{S_A} offen offset:1536 sc1
    s_mov_b64 exec, -1
    s_waitcnt vmcnt(0)
    {mfma32(S, K, Q, "0")}
    s_nop 15""")
    for i in range(16):
        g(f"v_sub_f32 v{S + i}, v{S + i}, v{M}")
    for i in range(16):
        g(f"v_exp_f32 v{S + i}, v{S + i}")
    g(f"""s_nop 1
    {smf(T, V, S)}
    {smf(T, V + 4, S + 8)}
    s_nop 15
    s_add_u32 s{S_A}, s{S_A}, 2048
    s_cmp_lt_u32 s{S_A}, {KVOFF + 64 * 2048}
    s_cbranch_scc1 {l2}
    s_branch L_norm""")


def g_tail(g):
    o = g.o
    OF, B0, WO = 48, 16, 128
    l, d = g.lab("op"), g.lab("od")
    g(f"""s_lshl_b32 s{S_A}, s{S_RB}, 16
    s_lshl_b32 s{S_B}, s{S_LO}, 15
    s_add_u32 s{S_A}, s{S_A}, s{S_B}
    s_lshl_b32 s{S_B}, s{S_KH}, 14
    s_add_u32 s{S_A}, s{S_A}, s{S_B}
    s_add_u32 s{S_A}, s{S_A}, {OOFF}
    s_add_u32 s{S_B}, s{S_A}, 4096
    s_add_u32 s{S_C}, s{S_A}, 8192
    s_add_u32 s{S_D}, s{S_A}, 12288
    s_xor_b32 s{S_E}, s{S_IDX}, 2
    s_mul_i32 s{S_PRING}, s{S_E}, 12288
    s_add_u32 s{S_PRING}, s{S_PRING}, {LGR}
    v_add_u32 v4, s{S_RING}, v{V_L16}
    v_add_u32 v5, s{S_PRING}, v{V_L16}
    s_mov_b32 s{S_SPIN}, {SPIN}
    s_waitcnt vmcnt(0)
    {l}:""")
    for i in range(16):
        g(f"buffer_load_dwordx4 {vr(OF + 4 * i, 4)}, v{V_L16}, {sr(R_WS)}, s{S_A + (i >> 2)} offen offset:{1024 * (i & 3)} sc1")
    g(f"s_waitcnt vmcnt(13)\nv_max3_u32 v6, v{OF}, v{OF + 4}, v{OF + 8}")
    for i in range(3, 15, 2):
        g(f"s_waitcnt vmcnt({14 - i})\nv_max3_u32 v6, v6, v{OF + 4 * i}, v{OF + 4 * i + 4}")
    g(f"""s_waitcnt vmcnt(0)
    v_max_u32 v6, v6, v{OF + 60}
    v_cmp_eq_u32 vcc, -1, v6
    s_cmp_eq_u64 vcc, 0
    s_cbranch_scc1 {d}
    s_sub_u32 s{S_SPIN}, s{S_SPIN}, 1
    s_cmp_lg_u32 s{S_SPIN}, 0
    s_cbranch_scc1 {l}
    {d}:""")
    g.stamp(10)
    for s in range(16):
        g(mfma32(B0 + 16, WO + 8 * s + 4, OF + 4 * s))
    for s in range(16):
        g(mfma32(B0, WO + 8 * s, OF + 4 * s))
        if s >= 12:
            g(f"ds_write_b128 v4, {vr(B0 + 16 + 4 * (s - 12), 4)} offset:{1024 * (s - 12)}")
    g("s_waitcnt lgkmcnt(0)\ns_barrier")
    for i in range(4):
        g.lds(f"ds_read_b128 {vr(OF + 4 * i, 4)}, v5 offset:{1024 * i}", f"e{i}")
    g("s_nop 7")
    for i in range(4):
        g.wlg(f"e{i}")
        for j in range(0, 4, 2):
            g(f"v_pk_add_f32 {vr(B0 + 4 * i + j, 2)}, {vr(B0 + 4 * i + j, 2)}, {vr(OF + 4 * i + j, 2)}")
        for j in range(2):
            g(f"v_cvt_pk_bf16_f32 v{B0 + 16 + 2 * i + j}, v{B0 + 4 * i + 2 * j}, v{B0 + 4 * i + 2 * j + 1}")
        if i & 1:
            b = B0 + 16 + 2 * (i - 1)
            g(f"""s_nop 1
            v_permlane32_swap_b32 v{b}, v{b + 2}
            v_permlane32_swap_b32 v{b + 1}, v{b + 3}
            buffer_store_dwordx4 {vr(b, 4)}, v123, {sr(R_OUT)}, s{S_K2} offen offset:{16 * (i - 1)}""")


def dump_stamps(g):
    if not g.o.prof:
        return
    g("s_waitcnt vmcnt(0)")
    g.stamp(11)
    g(f"""s_waitcnt lgkmcnt(0)
    s_lshl_b32 s{S_A}, s2, 3
    s_add_u32 s{S_A}, s{S_A}, s{S_W}
    s_lshl_b32 s{S_A}, s{S_A}, 6
    s_add_u32 s{S_A}, s{S_A}, {STOFF}""")
    for i in range(12):
        g(f"v_mov_b32 v{4 + i}, s{S_ST + 2 * i}")
    g("s_mov_b64 exec, 1")
    for i in range(3):
        g(f"buffer_store_dwordx4 {vr(4 + 4 * i, 4)}, off, {sr(R_WS)}, s{S_A} offset:{16 * i}")


def build(o):
    g = Gen(o)
    prologue(g)
    vm0 = list(g.vm)
    g(f"s_cmp_ge_u32 s{S_W}, 4\ns_cbranch_scc1 L_awave")
    g_wave(g)
    g("s_branch L_fin\nL_awave:")
    g.vm, g.lg = list(vm0), []
    a_wave(g)
    g("L_fin:")
    g.vm, g.lg = [], []
    finalize(g)
    g(f"s_cmp_ge_u32 s{S_W}, 4\ns_cbranch_scc1 L_done")
    g_tail(g)
    g("L_done:")
    dump_stamps(g)
    g("L_end:\ns_endpgm")
    slow_path(g)
    head = open("cdna_kernels/" + NAME + ".s.ref").read().split("; Override launch")[0]
    out = head + f"; @launch grid=(256,1,1) block=(512,1,1) lds={LDS_BYTES}\n"
    out += f""".amdgcn_target "amdgcn-amd-amdhsa--gfx950"
.text
.globl {NAME}_kernel
.p2align 8
.type {NAME}_kernel,@function
{NAME}_kernel:
"""
    out += "\n".join(g.L) + "\n"
    out += f""".section .rodata,"a"
.p2align 6
.amdhsa_kernel {NAME}_kernel
  .amdhsa_next_free_vgpr 256
  .amdhsa_next_free_sgpr 102
  .amdhsa_accum_offset 256
  .amdhsa_group_segment_fixed_size 0
  .amdhsa_kernarg_size 88
  .amdhsa_user_sgpr_count 2
  .amdhsa_user_sgpr_kernarg_segment_ptr 1
  .amdhsa_system_sgpr_workgroup_id_x 1
.end_amdhsa_kernel
"""
    return out


def parse(argv):
    p = argparse.ArgumentParser()
    p.add_argument("-o", default="cdna_kernels/" + NAME + ".s")
    p.add_argument("--prof", type=int, default=0)
    p.add_argument("--lr", type=int, default=2)
    p.add_argument("--rot", type=int, default=1)
    p.add_argument("--npre", type=int, default=0)
    p.add_argument("--kvsleep", type=int, default=2)
    p.add_argument("--hsleep", type=int, default=8)
    p.add_argument("--forceslow", type=int, default=0)
    p.add_argument("--gskip", type=int, default=0)
    return p.parse_args(argv)


if __name__ == "__main__":
    o = parse(sys.argv[1:])
    open(o.o, "w").write(build(o))
```

```python
import sys, struct, argparse

NAME = "parallel_sum__grouped_kv_mqa__dense_activation_silu__prompt"
L2E = 1.4426950408889634


def f32(x):
    return "0x%08x" % struct.unpack("<I", struct.pack("<f", x))[0]


KVOFF = 0
OOFF = 0x20000
HOFF = 0x240000
HRB = 48 * 4096
FOFF = 0x8F0000
STOFF = 0x900000
WSUSED = 0xA00000

LX = 0
LQR = 65536
LGR = 98304
LQF = 147456
LCNT = 155648
LDS_BYTES = 163840
C_Q1, C_Q2, C_G1, C_G1B, C_H, C_H2, C_G2, C_G2B, C_KV = 0, 8, 16, 24, 32, 36, 40, 48, 56

SPIN = 1 << 20


class Gen:
    def __init__(self, o):
        self.o = o
        self.L = []
        self.nlab = 0
        self.vm = []
        self.lg = []

    def __call__(self, s):
        for ln in s.split("\n"):
            ln = ln.strip()
            if ln:
                self.L.append(("" if ln.endswith(":") else "    ") + ln)

    def lab(self, p):
        self.nlab += 1
        return f"L_{p}_{self.nlab}"

    def vmem(self, s, tag):
        self(s)
        self.vm.append(tag)

    def lds(self, s, tag):
        self(s)
        self.lg.append(tag)

    def _n(self, q, tags):
        last = -1
        for i, t in enumerate(q):
            if t in tags:
                last = i
        return last

    def wvm(self, *tags):
        i = self._n(self.vm, tags)
        if i < 0:
            return
        n = min(len(self.vm) - 1 - i, 62)
        self(f"s_waitcnt vmcnt({n})")
        self.vm = self.vm[len(self.vm) - n:] if n else []

    def wlg(self, *tags):
        i = self._n(self.lg, tags)
        if i < 0:
            return
        n = min(len(self.lg) - 1 - i, 14)
        self(f"s_waitcnt lgkmcnt({n})")
        self.lg = self.lg[len(self.lg) - n:] if n else []

    def wvm0(self):
        self("s_waitcnt vmcnt(0)")
        self.vm = []

    def wlg0(self):
        self("s_waitcnt lgkmcnt(0)")
        self.lg = []

    def stamp(self, i):
        if self.o.prof:
            self(f"s_memrealtime s[{S_ST + 2 * i}:{S_ST + 2 * i + 1}]")

    def signal(self, vaddr, off):
        self(f"""s_mov_b64 exec, 1
        ds_add_u32 v{vaddr}, v{V_ONE} offset:{off}
        s_mov_b64 exec, -1""")
        self.lg.append("sig")

    def spin_lds(self, vaddr, off, target, sleep=1):
        l, d = self.lab("sp"), self.lab("spd")
        self(f"""s_mov_b32 s{S_SPIN}, {SPIN}
        {l}:
        ds_read_b32 v{V_T}, v{vaddr} offset:{off}
        s_waitcnt lgkmcnt(0)
        v_readfirstlane_b32 s{S_T}, v{V_T}
        s_cmp_ge_u32 s{S_T}, {target}
        s_cbranch_scc1 {d}
        s_sleep {sleep}
        s_sub_u32 s{S_SPIN}, s{S_SPIN}, 1
        s_cmp_lg_u32 s{S_SPIN}, 0
        s_cbranch_scc1 {l}
        {d}:""")
        self.lg = []


def vr(a, n):
    return f"v[{a}:{a + n - 1}]"


def sr(a, n=4):
    return f"s[{a}:{a + n - 1}]"


S_W, S_RB, S_CG, S_ROT = 26, 27, 3, 96
R_X, R_WQ, R_WK, R_WV, R_WO, R_W1, R_W2, R_OUT, R_DBG, R_WS, R_H = 28, 32, 36, 40, 44, 48, 52, 56, 60, 64, 68
S_A, S_B, S_C, S_D, S_E = 4, 5, 6, 7, 8
S_T, S_SPIN = 9, 10
S_KH, S_LO = 11, 12
S_RING, S_PRING = 13, 14
S_SOF = 15
S_MLO = 16
S_IDX = 18
S_K1, S_K2 = 19, 20
S_ST = 72

V_LANE, V_T, V_ONE, V_IDX = 0, 1, 2, 3
V_L16 = 124
V_CNT, V_CNTP = 125, 126


def mfma32(d, a, b, c=None):
    cs = vr(d, 16) if c is None else c
    return f"v_mfma_f32_32x32x16_bf16 {vr(d, 16)}, {vr(a, 4)}, {vr(b, 4)}, {cs}"


def smf(d, a, b):
    return f"v_smfmac_f32_32x32x32_bf16 {vr(d, 16)}, {vr(a, 4)}, {vr(b, 8)}, v{V_IDX}"


def srd(g, r, p, nbytes):
    g(f"""s_mov_b32 s{r}, s{p}
    s_mov_b32 s{r + 1}, s{p + 1}
    s_mov_b32 s{r + 2}, {nbytes}
    s_mov_b32 s{r + 3}, 0x00020000""")


def prologue(g):
    o = g.o
    lr = o.lr
    lc = 5 - lr
    g(f"""s_cmp_ge_u32 s2, 256
    s_cbranch_scc1 L_end
    s_load_dwordx16 s[4:19], s[0:1], 0
    s_load_dwordx4 s[20:23], s[0:1], 64
    s_load_dwordx2 s[24:25], s[0:1], 80""")
    g.stamp(0)
    g(f"""v_lshrrev_b32 v1, 6, v0
    v_and_b32 v0, 63, v0
    s_and_b32 s97, s2, 7
    v_readfirstlane_b32 s{S_W}, v1
    s_lshr_b32 s98, s2, 3
    s_and_b32 s99, s98, {(1 << lc) - 1}
    s_lshr_b32 s{S_ROT}, s98, {lc}
    s_and_b32 s100, s97, {(8 >> lc) - 1}
    s_lshl_b32 s100, s100, {lc}
    s_add_u32 s{S_CG}, s99, s100
    s_lshr_b32 s97, s97, {3 - lc}
    s_lshl_b32 s{S_RB}, s97, {lr}
    s_add_u32 s{S_RB}, s{S_RB}, s{S_ROT}
    s_and_b32 s{S_ROT}, s{S_ROT}, {3 if o.rot else 0}
    s_lshl_b32 s99, s99, {3 - lc}
    s_and_b32 s99, s99, {7 if o.rot else 0}
    s_add_u32 s99, s99, s{S_W}
    s_and_b32 s99, s99, 7
    v_lshrrev_b32 v4, 3, v0
    v_and_b32 v5, 7, v0
    v_lshlrev_b32 v6, 10, v4
    v_lshl_add_u32 v6, v5, 4, v6
    s_lshl_b32 s97, s{S_RB}, 16
    s_lshl_b32 s98, s99, 13
    s_add_u32 s97, s97, s98
    s_waitcnt lgkmcnt(0)""")
    srd(g, R_X, 4, 2048 * 1024)
    for j in range(8):
        g.vmem(f"buffer_load_dwordx4 {vr(16 + 4 * j, 4)}, v6, {sr(R_X)}, s97 offen offset:{128 * j}", f"x{j}")
    srd(g, R_WQ, 6, 512 * 1024)
    srd(g, R_WK, 8, 512 * 32)
    srd(g, R_WV, 10, 512 * 32)
    srd(g, R_WO, 12, 512 * 1024)
    srd(g, R_W1, 16, 512 * 2752)
    srd(g, R_W2, 18, 1376 * 1024)
    srd(g, R_OUT, 20, 2048 * 1024)
    srd(g, R_DBG, 22, 256)
    srd(g, R_WS, 24, WSUSED)
    g(f"""s_mul_i32 s98, s{S_RB}, {HRB}
    s_add_u32 s98, s98, {HOFF}
    s_add_u32 s{R_H}, s24, s98
    s_addc_u32 s{R_H + 1}, s25, 0
    s_mov_b32 s{R_H + 2}, {43 * 4096}
    s_mov_b32 s{R_H + 3}, 0x00020000
    s_and_b32 s{S_IDX}, s{S_W}, 3
    s_and_b32 s{S_LO}, s{S_W}, 1
    s_lshr_b32 s{S_KH}, s{S_IDX}, 1
    s_mov_b32 s{S_MLO}, 0x0000ffff
    s_mov_b32 s{S_MLO + 1}, 0x0000ffff
    v_lshlrev_b32 v{V_L16}, 4, v0
    v_mov_b32 v{V_ONE}, 1
    v_mov_b32 v123, 0
    v_mov_b32 v{V_IDX}, 0xdddddddd
    v_mov_b32 v{V_CNT}, {LCNT}""")
    g(f"""s_and_b32 s97, s99, 3
    s_lshl_b32 s97, s97, 3
    s_lshr_b32 s98, s99, 2
    s_lshl_b32 s98, s98, 15
    v_add_u32 v7, s97, v4
    v_xor_b32 v7, v7, v5
    v_lshlrev_b32 v7, 4, v7
    v_lshl_add_u32 v7, v5, 9, v7
    v_add_u32 v7, s98, v7""")


def layernorm(g, hooks=()):
    g(f"""s_mov_b32 s{S_K1}, 0x3f803f80
    v_mov_b32 v8, 0
    v_mov_b32 v9, 0
    v_mov_b32 v10, 0
    v_mov_b32 v11, 0""")
    for j in range(8):
        g.wvm(f"x{j}")
        for i in range(4):
            r = 16 + 4 * j + i
            g(f"v_dot2c_f32_bf16 v{8 + (i & 1)}, s{S_K1}, v{r}")
            g(f"v_dot2c_f32_bf16 v{10 + (i & 1)}, v{r}, v{r}")
    g.stamp(1)
    dpp = "row_mask:0xf bank_mask:0xf"
    g(f"""s_nop 2
    v_add_f32 v8, v8, v9
    v_add_f32 v10, v10, v11
    s_nop 0
    v_add_f32_dpp v8, v8, v8 quad_perm:[1,0,3,2] {dpp}
    v_add_f32_dpp v10, v10, v10 quad_perm:[1,0,3,2] {dpp}
    s_nop 0
    v_add_f32_dpp v8, v8, v8 quad_perm:[2,3,0,1] {dpp}
    v_add_f32_dpp v10, v10, v10 quad_perm:[2,3,0,1] {dpp}
    s_nop 0
    v_add_f32_dpp v8, v8, v8 row_half_mirror {dpp}
    v_add_f32_dpp v10, v10, v10 row_half_mirror {dpp}
    v_mul_f32 v8, {f32(1 / 512)}, v8
    v_mul_f32 v10, {f32(1 / 512)}, v10
    v_fma_f32 v10, -v8, v8, v10
    v_max_f32 v10, 0, v10
    v_cvt_pk_bf16_f32 v8, v8, v10
    v_and_b32 v10, 0xffff0000, v8
    v_lshlrev_b32 v8, 16, v8
    v_add_f32 v10, {f32(1e-5)}, v10
    v_cvt_pk_bf16_f32 v10, v10, v10
    v_and_b32 v10, 0xffff0000, v10
    v_sqrt_f32 v10, v10
    s_nop 0
    v_cvt_pk_bf16_f32 v10, v10, v10
    v_and_b32 v10, 0xffff0000, v10
    v_rcp_f32 v10, v10
    s_nop 0
    v_mul_f32 v10, {f32(-L2E)}, v10
    v_cvt_pk_bf16_f32 v10, v10, v10
    v_and_b32 v11, 0xffff0000, v10
    v_lshrrev_b32 v10, 16, v10
    v_mul_f32 v8, v8, v11
    v_sub_f32 v8, 0, v8""")
    for j in range(8):
        t = 48 + 8 * (j & 1)
        if j < len(hooks):
            hooks[j]()
        for i in range(4):
            r = 16 + 4 * j + i
            g(f"v_dot2_f32_bf16 v{t + 2 * i}, v{r}, v10, v8")
            g(f"v_dot2_f32_bf16 v{t + 2 * i + 1}, v{r}, v11, v8")
        if j > 0:
            p = 48 + 8 * ((j - 1) & 1)
            for i in range(4):
                g(f"v_cvt_pk_bf16_f32 v{16 + 4 * (j - 1) + i}, v{p + 2 * i}, v{p + 2 * i + 1}")
            g.lds(f"ds_write_b128 v7, {vr(16 + 4 * (j - 1), 4)} offset:{4096 * (j - 1)}", "xw")
    for i in range(4):
        g(f"v_cvt_pk_bf16_f32 v{44 + i}, v{56 + 2 * i}, v{57 + 2 * i}")
    g.lds(f"ds_write_b128 v7, {vr(44, 4)} offset:{4096 * 7}", "xw")


def xfrag_addrs(g, base):
    g(f"""v_and_b32 v4, 31, v0
    v_lshrrev_b32 v5, 5, v0
    s_lshl_b32 s{S_A}, s{S_KH}, 14
    s_lshl_b32 s{S_B}, s{S_ROT}, 12
    s_add_u32 s{S_A}, s{S_A}, s{S_B}
    s_lshl_b32 s{S_B}, s{S_KH}, 15
    s_add_u32 s{S_A}, s{S_A}, s{S_B}""")
    for i in range(4):
        g(f"""v_or_b32 v6, {2 * i}, v5
        v_xor_b32 v6, v6, v4
        v_lshlrev_b32 v6, 4, v6
        v_lshl_add_u32 v6, v5, 9, v6
        v_add_u32 v{base + i}, s{S_A}, v6
        v_xor_b32 v{base + 4 + i}, 0x8000, v{base + i}""")


def xfrag_next(g, base, q):
    m = (q ^ (q + 1)) << 12
    for i in range(8):
        g(f"v_xor_b32 v{base + i}, {m}, v{base + i}")


def step_soff(g, s, mul, base):
    g(f"""s_xor_b32 s{S_SOF}, s{S_ROT}, {s >> 2}
    s_lshl_b32 s{S_SOF}, s{S_SOF}, 2
    s_add_u32 s{S_SOF}, s{S_SOF}, {s & 3}
    s_mul_i32 s{S_SOF}, s{S_SOF}, {mul}
    s_add_u32 s{S_SOF}, s{S_SOF}, s{base}""")


def tr_lane(g):
    g("""v_bfe_u32 v4, v0, 2, 2
    v_lshrrev_b32 v5, 5, v0
    v_and_b32 v6, 3, v0
    v_lshlrev_b32 v6, 3, v6
    v_bfe_u32 v8, v0, 4, 1
    v_lshl_add_u32 v6, v8, 5, v6""")


def a_wave(g):
    o = g.o
    VQD, VQT, VXA = 116, 117, 104
    S_QB = S_C
    g(f"""s_lshl_b32 s{S_RING}, s{S_IDX}, 13
    s_add_u32 s{S_RING}, s{S_RING}, {LQR}
    s_xor_b32 s{S_PRING}, s{S_RING}, 0x4000
    v_lshrrev_b32 v8, 2, v0
    v_and_b32 v9, 3, v0
    v_lshlrev_b32 v{VQD}, 10, v8
    v_lshl_add_u32 v{VQD}, v9, 4, v{VQD}
    s_lshl_b32 s{S_QB}, s{S_KH}, 18
    s_lshl_b32 s{S_A}, s{S_CG}, 7
    s_add_u32 s{S_QB}, s{S_QB}, s{S_A}
    s_lshl_b32 s{S_A}, s{S_LO}, 6
    s_add_u32 s{S_QB}, s{S_QB}, s{S_A}""")

    def wq_dma(s):
        step_soff(g, s, 16384, S_QB)
        g(f"s_add_u32 m0, s{S_RING}, {1024 * (s & 7)}")
        g("s_nop 0")
        g.vmem(f"buffer_load_dwordx4 v{VQD}, {sr(R_WQ)}, s{S_SOF} offen lds", f"q{s}")

    lkv, lj = g.lab("akv"), g.lab("aj")
    g(f"s_cmp_eq_u32 s{S_CG}, 7\ns_cbranch_scc1 {lkv}")
    vm0 = list(g.vm)
    for s in range(8):
        wq_dma(s)
    g(f"s_branch {lj}\n{lkv}:")
    g(f"s_lshl_b32 s{S_A}, s{S_IDX}, 12\ns_add_u32 s{S_B}, s{S_A}, {LGR}")
    for R, lo in ((R_WK, 0), (R_WV, 16384)):
        g(f"s_add_u32 m0, s{S_B}, {lo}\ns_nop 0")
        for i in range(4):
            g(f"buffer_load_dwordx4 v{V_L16}, {sr(R)}, s{S_A} offen offset:{1024 * i} lds")
    g(f"{lj}:")
    W2R = 64

    def wq_reg(s):
        step_soff(g, s, 16384, S_QB)
        g.vmem(f"buffer_load_dwordx4 {vr(W2R + 4 * (s - 8), 4)}, v{VQD}, {sr(R_WQ)}, s{S_SOF} offen", f"q{s}")

    layernorm(g, [lambda s=s: wq_reg(s) for s in range(8, 16)])
    l2, l3 = g.lab("aj2"), g.lab("aj3")
    g(f"s_cmp_lg_u32 s{S_CG}, 7\ns_cbranch_scc1 {l2}")
    g(f"s_waitcnt vmcnt(8)\n{l2}:")
    g.wlg0()
    g.stamp(2)
    g("s_barrier")
    g("s_setprio 2")
    g.stamp(3)
    g(f"s_cbranch_scc1 {l3}")
    keep = list(g.vm)
    for s in range(8):
        wq_dma(s)
    g(f"s_waitcnt vmcnt(0)\n{l3}:")
    g.vm = keep
    xfrag_addrs(g, VXA)
    tr_lane(g)
    g(f"""v_lshl_add_u32 v4, v5, 3, v4
    v_lshl_add_u32 v{VQT}, v4, 6, v6
    v_add_u32 v{VQT}, s{S_RING}, v{VQT}
    s_lshl_b32 s{S_A}, s{S_LO}, 2
    v_add_u32 v{V_CNTP}, s{S_A}, v{V_CNT}""")
    A0, A1, WF, XF = 128, 144, 160, 192
    g(f"v_add_u32 v4, s{S_RING}, v{V_L16}")
    for half in range(2):
        if half == 0:
            g.wvm("q7")
        for i in range(8):
            g.lds(f"ds_read_b64_tr_b16 {vr(WF + 4 * i, 2)}, v{VQT} offset:{1024 * i}", f"w{i}")
            g.lds(f"ds_read_b64_tr_b16 {vr(WF + 4 * i + 2, 2)}, v{VQT} offset:{1024 * i + 256}", f"w{i}")
        for i in range(8):
            s = 8 * half + i
            if i == 4:
                xfrag_next(g, VXA, s // 4 - 1)
            for rt in range(2):
                g.lds(f"ds_read_b128 {vr(XF + 8 * i + 4 * rt, 4)}, v{VXA + 4 * rt + (s & 3)} offset:{1024 * (s & 3)}", f"x{i}")
        if half == 0:
            xfrag_next(g, VXA, 1)
        for i in range(8):
            g.wlg(f"w{i}", f"x{i}")
            first = half == 0 and i == 0
            g(mfma32(A0, WF + 4 * i, XF + 8 * i, "0" if first else None))
            g(mfma32(A1, WF + 4 * i, XF + 8 * i + 4, "0" if first else None))
            if half == 0:
                g.wvm(f"q{8 + i}")
                g.lds(f"ds_write_b128 v4, {vr(W2R + 4 * i, 4)} offset:{1024 * i}", "qw")
    g(f"v_add_u32 v5, s{S_PRING}, v{V_L16}")
    g(f"""s_lshl_b32 s{S_A}, s{S_KH}, 12
    s_lshl_b32 s{S_B}, s{S_LO}, 11
    s_add_u32 s{S_A}, s{S_A}, s{S_B}
    s_add_u32 s{S_A}, s{S_A}, {LQF}
    v_add_u32 v6, s{S_A}, v{V_L16}
    v_add_u32 v7, {LQF}, v{V_L16}
    s_nop 7""")
    for i in range(4):
        g.lds(f"ds_write_b128 v4, {vr(A1 + 4 * i, 4)} offset:{1024 * i}", "e")
    g.signal(V_CNTP, C_Q1)
    g.spin_lds(V_CNTP, C_Q1, 2, 0)
    for i in range(4):
        g.lds(f"ds_read_b128 {vr(WF + 4 * i, 4)}, v5 offset:{1024 * i}", f"e{i}")
    for i in range(4):
        g.wlg(f"e{i}")
        for j in range(4):
            g(f"v_add_f32 v{A0 + 4 * i + j}, v{A0 + 4 * i + j}, v{WF + 4 * i + j}")
    for i in range(8):
        g(f"v_cvt_pk_bf16_f32 v{A1 + i}, v{A0 + 2 * i}, v{A0 + 2 * i + 1}")
    g.lds(f"ds_write_b128 v6, {vr(A1, 4)}", "e")
    g.lds(f"ds_write_b128 v6, {vr(A1 + 4, 4)} offset:1024", "e")
    g.signal(V_CNT, C_Q2)
    Q, S0, S1, KV, ACC = 16, 48, 64, 80, 128
    VV, VP, VPL = 116, 117, 118
    g.wlg0()
    for i in range(128):
        g(f"v_mov_b32 v{ACC + i}, 0")
    for st in range(3):
        for i in range(8):
            g(f"v_mov_b32 v{KV + 12 * st + 4 + i}, 0")
    g("s_mov_b32 exec_lo, 0x00110000\ns_mov_b32 exec_hi, 0x00110000")
    for st in range(3):
        for i in range(8):
            g(f"v_mov_b32 v{KV + 12 * st + 4 + i}, 0x3f803f80")
    g(f"""s_mov_b64 exec, -1
    v_and_b32 v4, 15, v0
    v_lshrrev_b32 v5, 5, v0
    v_lshl_add_u32 v4, v5, 4, v4
    v_lshlrev_b32 v{VV}, 4, v4
    s_mul_i32 s{S_A}, s{S_IDX}, 2304
    v_add_u32 v{VP}, s{S_A}, v{V_L16}
    v_lshlrev_b32 v4, 2, v0
    v_add_u32 v{VPL}, s{S_A}, v4
    v_and_b32 v4, 7, v0
    v_lshlrev_b32 v4, 2, v4
    s_lshl_b32 s{S_B}, s{S_IDX}, 5
    s_lshl_b32 s{S_C}, s{S_IDX}, 15""")
    g.spin_lds(V_CNT, C_Q2, 4, 0)
    for q in range(8):
        g.lds(f"ds_read_b128 {vr(Q + 4 * q, 4)}, v7 offset:{1024 * q}", "q")
    g.stamp(4)
    l, d = g.lab("kvp"), g.lab("kvd")
    g(f"""s_mov_b32 s{S_SPIN}, {SPIN}
    {l}:
    buffer_load_dword v{V_T}, v4, {sr(R_DBG)}, s{S_B} offen sc1
    s_waitcnt vmcnt(0)
    v_cmp_ne_u32 vcc, 0, v{V_T}
    s_cmp_eq_u64 vcc, exec
    s_cbranch_scc1 {d}
    s_sleep {o.kvsleep}
    s_sub_u32 s{S_SPIN}, s{S_SPIN}, 1
    s_cmp_lg_u32 s{S_SPIN}, 0
    s_cbranch_scc1 {l}
    {d}:""")
    g.vm = []
    g.stamp(5)

    def kset(kt):
        return KV + 12 * (kt % 3)

    def load_k(kt):
        g.vmem(f"buffer_load_dwordx4 {vr(kset(kt), 4)}, v{V_L16}, {sr(R_WS)}, s{S_C} offen offset:{2048 * (kt & 1)} sc1", f"k{kt}")

    def load_v(kt):
        g(f"s_mov_b64 exec, {sr(S_MLO, 2)}")
        for j in range(2):
            g.vmem(f"buffer_load_dwordx4 {vr(kset(kt) + 4 + 4 * j, 4)}, v{VV}, {sr(R_WS)}, s{S_C} offen offset:{2048 * (kt & 1) + 1024 + 512 * j} sc1", f"v{kt}")
        g("s_mov_b64 exec, -1")
        if kt & 1:
            g(f"s_add_u32 s{S_C}, s{S_C}, 4096")

    for kt in range(2):
        load_k(kt)
        load_v(kt)
    g.wlg0()
    g.wvm("k0")
    g(mfma32(S0, kset(0), Q, "0"))
    g("s_nop 7\ns_nop 4")

    def part_writes(q):
        a, b = (VP, VPL) if q < 4 else (VP + 3, VPL + 3)
        off = 9216 * (q & 3)
        return [f"ds_write_b128 v{a}, {vr(ACC + 16 * q, 4)} offset:{off}",
                f"ds_write_b128 v{a}, {vr(ACC + 16 * q + 4, 4)} offset:{off + 1024}",
                f"ds_write_b32 v{b}, v{ACC + 16 * q + 8} offset:{off + 2048}"]

    g(f"v_add_u32 v{VP + 3}, {4 * 9216}, v{VP}\nv_add_u32 v{VPL + 3}, {4 * 9216}, v{VPL}")
    NT = 128
    for t in range(NT):
        kt, q = divmod(t, 8)
        cur, nxt = (S0, S1) if t % 2 == 0 else (S1, S0)
        extra = {}

        def at(e, f):
            extra.setdefault(e, []).append(f)

        if t > 0:
            ktp, qp = divmod(t - 1, 8)
            at(1, lambda ktp=ktp, qp=qp: g(smf(ACC + 16 * qp, kset(ktp) + 8, nxt + 8)))
        if t + 1 < NT:
            ktn, qn = divmod(t + 1, 8)
            if qn == 0:
                at(3, lambda ktn=ktn: g.wvm(f"k{ktn}"))
            at(4, lambda ktn=ktn, qn=qn: g(mfma32(nxt, kset(ktn), Q + 4 * qn, "0")))
        if q == 0:
            at(9, lambda: g.wvm(f"v{kt}"))
        at(10, lambda: g(smf(ACC + 16 * q, kset(kt) + 4, cur)))
        if q == 1 and kt + 2 < 16:
            at(6, lambda: load_k(kt + 2))
            at(12, lambda: load_v(kt + 2))
        if q == 0 and kt in (4, 8, 12):
            at(0, lambda: g.stamp({4: 7, 8: 8, 12: 10}[kt]))
        if kt == 14 and q == 4:
            at(6, lambda: g.lds(f"ds_read_b64 v[4:5], v{V_CNT} offset:{C_G1}", "g1"))
        if kt == 14 and q == 6:
            def chk():
                ok = g.lab("g1ok")
                g.wlg0()
                g(f"""v_add_u32 v4, v4, v5
                s_nop 0
                v_readfirstlane_b32 s{S_T}, v4
                s_cmp_ge_u32 s{S_T}, 4
                s_cbranch_scc1 {ok}""")
                g.spin_lds(V_CNT, C_G1, 2)
                g.spin_lds(V_CNT, C_G1 + 4, 2)
                g(f"{ok}:")
            at(13, chk)
        if kt == 15 and q >= 2:
            for e, w in zip((2, 7, 12), part_writes(q - 2)):
                at(e, lambda w=w: g(w))
        for e in range(16):
            g(f"v_exp_f32 v{cur + e}, v{cur + e}")
            for f in extra.get(e, []):
                f()
    g("s_nop 1")
    g(smf(ACC + 16 * 7, kset(15) + 8, S1 + 8))
    for w in part_writes(6):
        g(w)
    g("s_nop 7\ns_nop 2")
    for w in part_writes(7):
        g(w)
    g.stamp(6)
    g.wlg0()


def g_wave(g):
    o = g.o
    VD, VT, VXA = 116, 119, 104
    S_WB = S_C
    g(f"""s_mul_i32 s{S_RING}, s{S_IDX}, 12288
    s_add_u32 s{S_RING}, s{S_RING}, {LGR}
    s_xor_b32 s{S_A}, s{S_IDX}, 2
    s_mul_i32 s{S_PRING}, s{S_A}, 12288
    s_add_u32 s{S_PRING}, s{S_PRING}, {LGR}
    s_mul_i32 s{S_WB}, s{S_KH}, {256 * 2752}
    s_mul_i32 s{S_A}, s{S_CG}, 384
    s_add_u32 s{S_WB}, s{S_WB}, s{S_A}
    s_mul_i32 s{S_A}, s{S_LO}, 192
    s_add_u32 s{S_WB}, s{S_WB}, s{S_A}
    s_mov_b32 s{S_A}, 0x15555556""")
    for i in range(3):
        g(f"""v_add_u32 v8, {64 * i}, v0
        v_mul_hi_u32 v9, v8, s{S_A}
        v_mul_u32_u24 v10, 12, v9
        v_sub_u32 v10, v8, v10
        v_mul_u32_u24 v9, 2752, v9
        v_lshl_add_u32 v{VD + i}, v10, 4, v9""")
        if i:
            g(f"v_subrev_u32 v{VD + i}, {1024 * i}, v{VD + i}")
    g(f"""v_mov_b32 v8, 0
    v_lshl_add_u32 v9, v0, 2, v{V_CNT}
    ds_write_b32 v9, v8""")

    def w1_dma(s):
        step_soff(g, s, 16 * 2752, S_WB)
        g(f"s_add_u32 m0, s{S_RING}, {3072 * (s & 3)}\ns_nop 0")
        for i in range(3):
            g.vmem(f"buffer_load_dwordx4 v{VD + i}, {sr(R_W1)}, s{S_SOF} offen offset:{1024 * i} lds", f"w{s}")

    layernorm(g)
    lkv, lj = g.lab("gkv"), g.lab("gj")
    g(f"s_cmp_eq_u32 s{S_CG}, 7\ns_cbranch_scc1 {lkv}")
    NPRE = o.npre
    for s in range(NPRE):
        w1_dma(s)
    g.wlg0()
    g.stamp(2)
    g("s_barrier")
    g.stamp(3)
    g(f"s_branch {lj}\n{lkv}:")
    keep = list(g.vm)
    g.vm = []
    g(f"""v_and_b32 v4, 15, v0
    v_lshrrev_b32 v5, 4, v0
    s_lshl_b32 s{S_A}, s{S_LO}, 4
    v_add_u32 v6, s{S_A}, v4
    s_lshl_b32 s{S_B}, s{S_KH}, 15
    v_xor_b32 v8, v6, v5
    v_lshlrev_b32 v8, 4, v8
    v_lshl_add_u32 v8, v5, 9, v8
    v_add_u32 v8, s{S_B}, v8
    v_xor_b32 v9, 64, v8
    v_add_u32 v9, 2048, v9
    v_bfe_u32 v10, v0, 2, 2
    v_lshl_add_u32 v10, v5, 3, v10
    v_lshlrev_b32 v10, 5, v10
    v_and_b32 v11, 3, v0
    v_lshl_add_u32 v10, v11, 3, v10
    v_add_u32 v10, {LGR}, v10
    v_and_b32 v11, 1, v5
    v_lshrrev_b32 v12, 1, v5
    v_lshl_add_u32 v13, v11, 5, v6
    v_lshlrev_b32 v13, 4, v13
    v_lshl_add_u32 v13, v12, 3, v13
    v_lshl_add_u32 v14, v12, 4, v4
    v_lshlrev_b32 v14, 4, v14
    v_lshl_add_u32 v14, v11, 3, v14
    s_lshl_b32 s{S_A}, s{S_LO}, 9
    s_add_u32 s{S_A}, s{S_A}, 1024
    v_add_u32 v14, s{S_A}, v14
    s_lshl_b32 s{S_D}, s{S_RB}, 12
    s_lshl_b32 s{S_A}, s{S_KH}, 11
    s_add_u32 s{S_D}, s{S_D}, s{S_A}
    s_setprio 3""")
    g.wlg0()
    g.stamp(2)
    g("s_barrier")
    g.stamp(3)
    FR = 128
    DK, DV = 16, 20

    def kv_reads(s):
        b = FR + 12 * (s % 3)
        g.lds(f"ds_read_b128 {vr(b, 4)}, v{8 + (s & 1)} offset:{4096 * (s >> 1)}", f"s{s}")
        for j in range(2):
            g.lds(f"ds_read_b64_tr_b16 {vr(b + 4 + 4 * j, 2)}, v10 offset:{1024 * s + 16384 * j}", f"s{s}")
            g.lds(f"ds_read_b64_tr_b16 {vr(b + 6 + 4 * j, 2)}, v10 offset:{1024 * s + 16384 * j + 128}", f"s{s}")

    kv_reads(0)
    kv_reads(1)
    for s in range(16):
        if s + 2 < 16:
            kv_reads(s + 2)
        g.wlg(f"s{s}")
        b = FR + 12 * (s % 3)
        g(f"v_mfma_f32_16x16x32_bf16 {vr(DK, 4)}, {vr(b + 4, 4)}, {vr(b, 4)}, {vr(DK, 4) if s else 0}")
        g(f"v_mfma_f32_16x16x32_bf16 {vr(DV, 4)}, {vr(b, 4)}, {vr(b + 8, 4)}, {vr(DV, 4) if s else 0}")
    g("s_nop 6")
    for i in range(4):
        g(f"v_mul_f32 v{DK + i}, {f32(0.25 / L2E)}, v{DK + i}")
    for i in range(4):
        g(f"v_mul_f32 v{DV + i}, {f32(-1 / L2E)}, v{DV + i}")
    g(f"""v_cvt_pk_bf16_f32 v{DK}, v{DK}, v{DK + 1}
    v_cvt_pk_bf16_f32 v{DK + 1}, v{DK + 2}, v{DK + 3}
    v_cvt_pk_bf16_f32 v{DV}, v{DV}, v{DV + 1}
    v_cvt_pk_bf16_f32 v{DV + 1}, v{DV + 2}, v{DV + 3}
    buffer_store_dwordx2 {vr(DK, 2)}, v13, {sr(R_WS)}, s{S_D} offen sc1
    buffer_store_dwordx2 {vr(DV, 2)}, v14, {sr(R_WS)}, s{S_D} offen sc1
    s_waitcnt vmcnt(0)""")
    nl = g.lab("kvnl")
    g(f"""s_mov_b64 exec, 1
    ds_add_rtn_u32 v{V_T}, v{V_CNT}, v{V_ONE} offset:{C_KV}
    s_waitcnt lgkmcnt(0)
    v_readfirstlane_b32 s{S_T}, v{V_T}
    s_cmp_lg_u32 s{S_T}, 3
    s_cbranch_scc1 {nl}
    s_lshl_b32 s{S_A}, s{S_RB}, 2
    buffer_store_dword v{V_ONE}, off, {sr(R_DBG)}, s{S_A} sc1
    {nl}:
    s_mov_b64 exec, -1""")
    g.spin_lds(V_CNT, C_KV, 4)
    for s in range(NPRE):
        w1_dma(s)
    g(f"{lj}:\ns_setprio 3")
    g.vm = keep
    g(f"s_lshl_b32 s{S_D}, s{S_RB}, 8\ns_add_u32 s{S_D}, s{S_D}, {FOFF}")
    g.vmem(f"buffer_load_dword v115, off, {sr(R_WS)}, s{S_D} offset:128 sc1", "ep")
    for s in range(NPRE, 4):
        w1_dma(s)
    xfrag_addrs(g, VXA)
    tr_lane(g)
    g(f"""v_lshl_add_u32 v4, v5, 3, v4
    v_mul_u32_u24 v4, 192, v4
    v_add3_u32 v{VT}, v4, v6, s{S_RING}
    s_lshl_b32 s{S_A}, s{S_LO}, 2
    v_add_u32 v{V_CNTP}, s{S_A}, v{V_CNT}""")
    A0, A1 = 128, 176

    def fr(s):
        return 16 + 20 * (s & 1)

    def w1_reads(s):
        if s and (s & 3) == 0:
            xfrag_next(g, VXA, s // 4 - 1)
        g.wvm(f"w{s}")
        b = fr(s)
        for rt in range(2):
            g.lds(f"ds_read_b128 {vr(b + 12 + 4 * rt, 4)}, v{VXA + 4 * rt + (s & 3)} offset:{1024 * (s & 3)}", f"r{s}")
        for ct in range(3):
            for j in range(2):
                g.lds(f"ds_read_b64_tr_b16 {vr(b + 4 * ct + 2 * j, 2)}, v{VT} offset:{3072 * (s & 3) + 64 * ct + 768 * j}", f"r{s}")

    w1_reads(0)
    for s in range(16):
        g.wlg(f"r{s}")
        if s + 4 < 16:
            w1_dma(s + 4)
        if s + 1 < 16:
            w1_reads(s + 1)
        b = fr(s)
        g("s_setprio 0")
        for ct in range(3):
            g(mfma32(A1 + 16 * ct, b + 4 * ct, b + 16, None if s else "0"))
        for ct in range(3):
            g(mfma32(A0 + 16 * ct, b + 4 * ct, b + 12, None if s else "0"))
        g("s_setprio 3")
    g.stamp(4)
    g(f"""v_mov_b32 v8, -1
    v_mov_b32 v9, -1
    v_mov_b32 v10, -1
    v_mov_b32 v11, -1
    s_lshl_b32 s{S_A}, s{S_RB}, 16
    s_lshl_b32 s{S_B}, s{S_CG}, 12
    s_add_u32 s{S_A}, s{S_A}, s{S_B}
    s_lshl_b32 s{S_B}, s{S_IDX}, 10
    s_add_u32 s{S_A}, s{S_A}, s{S_B}
    s_add_u32 s{S_A}, s{S_A}, {OOFF}
    s_add_u32 s{S_B}, s{S_A}, 32768
    buffer_store_dwordx4 v[8:11], v{V_L16}, {sr(R_WS)}, s{S_A} offen sc1
    buffer_store_dwordx4 v[8:11], v{V_L16}, {sr(R_WS)}, s{S_B} offen sc1
    v_add_u32 v4, s{S_RING}, v{V_L16}
    v_add_u32 v5, s{S_PRING}, v{V_L16}""")
    for i in range(12):
        g.lds(f"ds_write_b128 v4, {vr(A1 + 4 * i, 4)} offset:{1024 * i}", "e")
    g.signal(V_CNTP, C_G1)
    g.spin_lds(V_CNTP, C_G1, 2)
    for i in range(12):
        g.lds(f"ds_read_b128 {vr(A1 + 4 * i, 4)}, v5 offset:{1024 * i}", f"e{i}")
    g(f"""s_mul_i32 s{S_A}, s{S_RB}, {HRB}
    s_mul_i32 s{S_B}, s{S_CG}, {6 * 4096}
    s_add_u32 s{S_A}, s{S_A}, s{S_B}
    s_mul_i32 s{S_B}, s{S_LO}, {3 * 4096}
    s_add_u32 s{S_A}, s{S_A}, s{S_B}
    s_lshl_b32 s{S_B}, s{S_KH}, 10
    s_add_u32 s{S_A}, s{S_A}, s{S_B}
    s_add_u32 s{S_A}, s{S_A}, {HOFF}""")
    for f in range(6):
        a, t = A0 + 8 * f, A1 + 8 * f
        g.wlg(f"e{2 * f + 1}")
        for i in range(0, 8, 2):
            g(f"v_pk_add_f32 {vr(a + i, 2)}, {vr(a + i, 2)}, {vr(t + i, 2)}")
        for i in range(8):
            g(f"v_exp_f32 v{t + i}, v{a + i}")
        for i in range(0, 8, 2):
            g(f"v_pk_add_f32 {vr(t + i, 2)}, {vr(t + i, 2)}, 1.0 op_sel_hi:[1,0]")
        for i in range(8):
            g(f"v_rcp_f32 v{t + i}, v{t + i}")
        for i in range(0, 8, 2):
            g(f"v_pk_mul_f32 {vr(a + i, 2)}, {vr(a + i, 2)}, {vr(t + i, 2)}")
        for i in range(4):
            g(f"v_cvt_pk_bf16_f32 v{16 + 4 * f + i}, v{a + 2 * i}, v{a + 2 * i + 1}")
        g(f"buffer_store_dwordx4 {vr(16 + 4 * f, 4)}, v{V_L16}, {sr(R_WS)}, s{S_A} offen offset:{2048 * (f & 1)} sc1")
        if f & 1:
            g(f"s_add_u32 s{S_A}, s{S_A}, 4096")
    g.signal(V_CNTP, C_G1B)
    g.wvm0()
    g.stamp(5)
    if o.gskip:
        g(f"v_mov_b32 v123, 0\ns_mov_b32 s{S_K2}, 0x7fffffff")
        return
    nl = g.lab("hnl")
    g("v_add_u32 v115, 0x9e3779b9, v115")
    g(f"""s_mov_b64 exec, 1
    ds_add_rtn_u32 v{V_T}, v{V_CNT}, v{V_ONE} offset:{C_H}
    s_waitcnt lgkmcnt(0)
    v_readfirstlane_b32 s{S_E}, v{V_T}
    s_lshl_b32 s{S_A}, s{S_CG}, 2
    s_add_u32 s{S_A}, s{S_A}, s{S_D}
    s_cmp_lg_u32 s{S_E}, 3
    s_cbranch_scc1 {nl}
    buffer_store_dword v115, off, {sr(R_WS)}, s{S_A} sc1
    {nl}:
    s_mov_b64 exec, -1""")
    g.spin_lds(V_CNTP, C_G1B, 2)
    VT0, VT1 = 118, 119
    g(f"""v_lshrrev_b32 v4, 3, v0
    v_and_b32 v5, 7, v0
    v_bfe_u32 v6, v0, 4, 1
    v_lshlrev_b32 v6, 2, v6
    v_xor_b32 v5, v5, v6
    v_lshlrev_b32 v{VD}, 10, v4
    v_lshl_add_u32 v{VD}, v5, 4, v{VD}
    v_add_u32 v{VD + 1}, {8192 - 1024}, v{VD}""")
    tr_lane(g)
    g(f"""v_lshrrev_b32 v8, 1, v4
    v_xor_b32 v8, s{S_KH}, v8
    v_lshl_add_u32 v6, v8, 6, v6
    v_lshl_add_u32 v4, v5, 2, v4
    v_lshl_add_u32 v4, v4, 7, v6
    v_add_u32 v{VT0}, s{S_RING}, v4
    v_xor_b32 v4, 64, v4
    v_add_u32 v{VT1}, s{S_RING}, v4
    s_mul_i32 s{S_WB}, s{S_IDX}, {352 * 1024}
    s_lshl_b32 s{S_A}, s{S_CG}, 7
    s_add_u32 s{S_WB}, s{S_WB}, s{S_A}
    s_xor_b32 s{S_A}, s{S_IDX}, 1
    s_mul_i32 s{S_PRING}, s{S_A}, 12288
    s_add_u32 s{S_PRING}, s{S_PRING}, {LGR}
    s_lshl_b32 s{S_A}, s{S_KH}, 2
    v_add_u32 v{V_CNTP}, s{S_A}, v{V_CNT}
    s_lshl_b32 s{S_A}, s{S_LO}, 10
    v_add_u32 v120, s{S_A}, v{V_L16}
    v_xor_b32 v121, 1024, v120
    s_mul_i32 s{S_B}, s{S_IDX}, {11 * 4096}""")

    def w_dma(R, s, tag):
        g(f"s_add_u32 m0, s{S_RING}, {2048 * (s % 6)}\ns_nop 0")
        for i in range(2):
            g.vmem(f"buffer_load_dwordx4 v{VD + i}, {sr(R)}, s{S_WB} offen offset:{1024 * i} lds", tag)
        g(f"s_add_u32 s{S_WB}, s{S_WB}, 16384")

    for s in range(6):
        w_dma(R_W2, s, f"w{s}")
    XR = 96
    g(f"""v_and_b32 v4, 31, v0
    v_lshrrev_b32 v5, 5, v0
    v_lshlrev_b32 v4, 10, v4
    v_lshl_add_u32 v122, v5, 3, v4
    v_lshl_add_u32 v123, v5, 4, v4
    s_lshl_b32 s{S_K2}, s{S_RB}, 16
    s_lshl_b32 s{S_A}, s{S_LO}, 15
    s_add_u32 s{S_K2}, s{S_K2}, s{S_A}
    s_lshl_b32 s{S_A}, s{S_CG}, 7
    s_add_u32 s{S_K2}, s{S_K2}, s{S_A}
    s_lshl_b32 s{S_A}, s{S_KH}, 6
    s_add_u32 s{S_K2}, s{S_K2}, s{S_A}""")
    for i in range(4):
        g.vmem(f"buffer_load_dwordx2 {vr(XR + 2 * i, 2)}, v122, {sr(R_X)}, s{S_K2} offen offset:{16 * i}", "xr")
    l, d, oth, j2 = g.lab("hp"), g.lab("hd"), g.lab("ho"), g.lab("hj")
    g(f"""s_cmp_lg_u32 s{S_E}, 3
    s_cbranch_scc1 {oth}
    v_and_b32 v4, 7, v0
    v_lshlrev_b32 v4, 2, v4
    s_mov_b32 s{S_SPIN}, {SPIN}
    {l}:
    buffer_load_dword v{V_T}, v4, {sr(R_WS)}, s{S_D} offen sc1
    s_waitcnt vmcnt(0)
    v_cmp_eq_u32 vcc, v115, v{V_T}
    s_cmp_eq_u64 vcc, exec
    s_cbranch_scc1 {d}
    s_sleep {o.hsleep}
    s_sub_u32 s{S_SPIN}, s{S_SPIN}, 1
    s_cmp_lg_u32 s{S_SPIN}, 0
    s_cbranch_scc1 {l}
    {d}:""")
    g.signal(V_CNT, C_H2)
    g(f"""s_cmp_lg_u32 s{S_CG}, 0
    s_cbranch_scc1 {j2}
    s_mov_b64 exec, 1
    buffer_store_dword v115, off, {sr(R_WS)}, s{S_D} offset:128 sc1
    s_mov_b64 exec, -1
    s_branch {j2}
    {oth}:""")
    g.spin_lds(V_CNT, C_H2, 1, 4)
    g(f"{j2}:")
    g.lg = ["sig"]
    g.stamp(6)
    HD = 6
    HF, WFb = 128, 80
    B0, B1 = 16, 48

    def h_load(s):
        for rt in range(2):
            g.vmem(f"buffer_load_dwordx4 {vr(HF + 8 * (s % HD) + 4 * rt, 4)}, v{120 + rt}, {sr(R_H)}, s{S_B} offen offset:{2048 * (s & 1)} sc1", f"h{s}")
        if s & 1:
            g(f"s_add_u32 s{S_B}, s{S_B}, 4096")

    def w_reads(s, dst):
        for ct in range(2):
            for j in range(2):
                g.lds(f"ds_read_b64_tr_b16 {vr(dst + 4 * ct + 2 * j, 2)}, v{VT0 + ct} offset:{2048 * (s % 6) + 1024 * j}", f"r{s}")

    for s in range(HD):
        h_load(s)
    g.wvm("w0")
    w_reads(0, WFb)
    for s in range(22):
        g.wlg(f"r{s}")
        if s + 6 < 22:
            w_dma(R_W2, s + 6, f"w{s + 6}")
        if s + 1 < 22:
            g.wvm(f"w{s + 1}", f"h{s}")
            w_reads(s + 1, WFb + 8 * ((s + 1) & 1))
        g.wvm(f"h{s}")
        wb, hb = WFb + 8 * (s & 1), HF + 8 * (s % HD)
        g("s_setprio 0")
        for ct in range(2):
            g(mfma32(B1 + 16 * ct, wb + 4 * ct, hb + 4, None if s else "0"))
        for ct in range(2):
            g(mfma32(B0 + 16 * ct, wb + 4 * ct, hb, None if s else "0"))
        g("s_setprio 3")
        if s + HD < 22:
            h_load(s + HD)
    g.stamp(7)
    g(f"""v_add_u32 v4, s{S_RING}, v{V_L16}
    v_add_u32 v5, s{S_PRING}, v{V_L16}
    s_nop 7
    s_nop 1""")
    for i in range(8):
        g.lds(f"ds_write_b128 v4, {vr(B1 + 4 * i, 4)} offset:{1024 * i}", "e")
    g.signal(V_CNTP, C_G2)
    g.spin_lds(V_CNTP, C_G2, 2)
    for i in range(8):
        g.lds(f"ds_read_b128 {vr(B1 + 4 * i, 4)}, v5 offset:{1024 * i}", f"e{i}")
    g.wlg0()
    g.signal(V_CNTP, C_G2B)
    g(f"s_mov_b32 s{S_A}, {f32(-1 / L2E)}")
    for i in range(0, 32, 2):
        g(f"v_pk_add_f32 {vr(B0 + i, 2)}, {vr(B0 + i, 2)}, {vr(B1 + i, 2)}")
    for i in range(8):
        g(f"v_lshlrev_b32 v{B1 + 2 * i}, 16, v{XR + i}")
        g(f"v_and_b32 v{B1 + 2 * i + 1}, 0xffff0000, v{XR + i}")
    for i in range(16):
        g(f"v_fma_f32 v{B0 + i}, v{B0 + i}, s{S_A}, v{B1 + i}")
    for i in range(16, 32):
        g(f"v_mul_f32 v{B0 + i}, s{S_A}, v{B0 + i}")
    g.spin_lds(V_CNTP, C_G2B, 2)
    g(f"""s_lshl_b32 s{S_WB}, s{S_KH}, 18
    s_lshl_b32 s{S_A}, s{S_CG}, 7
    s_add_u32 s{S_WB}, s{S_WB}, s{S_A}""")
    g.vm = []
    for s in range(6):
        w_dma(R_WO, s, f"w{s}")
    for s in range(16):
        g.wvm(f"w{s}")
        w_reads(s, 128 + 8 * s)
        if s + 6 < 16:
            g.wlg0()
            w_dma(R_WO, s + 6, f"w{s + 6}")
    g.wlg0()
    g.stamp(8)


def finalize(g):
    T = 48
    g(f"""s_mul_i32 s{S_A}, s{S_W}, 9216
    v_add_u32 v4, s{S_A}, v{V_L16}
    v_lshlrev_b32 v5, 2, v0
    v_add_u32 v5, s{S_A}, v5
    s_lshl_b32 s{S_D}, s{S_RB}, 16
    s_lshl_b32 s{S_B}, s{S_CG}, 12
    s_add_u32 s{S_D}, s{S_D}, s{S_B}
    s_lshl_b32 s{S_B}, s{S_IDX}, 10
    s_add_u32 s{S_D}, s{S_D}, s{S_B}
    s_lshr_b32 s{S_B}, s{S_W}, 2
    s_lshl_b32 s{S_B}, s{S_B}, 15
    s_add_u32 s{S_D}, s{S_D}, s{S_B}
    s_add_u32 s{S_D}, s{S_D}, {OOFF}
    s_mov_b32 s{S_A}, {f32(2.0 ** -40)}
    s_mov_b32 s{S_B}, {f32(2.0 ** 40)}
    s_barrier""")
    g.stamp(9)
    for a in range(4):
        g.lds(f"ds_read_b32 v{T + 40 + a}, v5 offset:{2304 * a + 2048}", "l")
    for a in range(4):
        for j in range(2):
            g.lds(f"ds_read_b128 {vr(T + (8 + 8 * a if a else 0) + 4 * j, 4)}, v4 offset:{2304 * a + 1024 * j}", f"p{a}")
    g.wlg("l")
    g(f"""v_add_f32 v{T + 40}, v{T + 40}, v{T + 41}
    v_add_f32 v{T + 42}, v{T + 42}, v{T + 43}
    v_add_f32 v{T + 8}, v{T + 40}, v{T + 42}
    v_cmp_lt_f32 vcc, s{S_A}, v{T + 8}
    v_cmp_gt_f32 s[98:99], s{S_B}, v{T + 8}""")
    for a in range(1, 4):
        g.wlg(f"p{a}")
        for i in range(0, 8, 2):
            g(f"v_pk_add_f32 {vr(T + i, 2)}, {vr(T + i, 2)}, {vr(T + 8 + 8 * a + i, 2)}")
    g(f"""s_and_b64 vcc, vcc, s[98:99]
    s_cmp_eq_u64 vcc, exec
    {"s_cbranch_scc0 L_slow" if not g.o.forceslow else "s_branch L_slow"}
    L_norm:
    v_rcp_f32 v{T + 8}, v{T + 8}
    s_nop 0""")
    for i in range(8):
        g(f"v_mul_f32 v{T + i}, v{T + i}, v{T + 8}")
    for i in range(4):
        g(f"v_cvt_pk_bf16_f32 v{T + 12 + i}, v{T + 2 * i}, v{T + 2 * i + 1}")
    g(f"""v_min_u32 v{T + 12}, 0xfffffffe, v{T + 12}
    buffer_store_dwordx4 {vr(T + 12, 4)}, v{V_L16}, {sr(R_WS)}, s{S_D} offen sc1""")


def slow_path(g):
    T, S, Q, K, V, M = 48, 64, 80, 84, 88, 96
    l1, l2 = g.lab("s1"), g.lab("s2")
    g(f"""L_slow:
    s_lshl_b32 s{S_A}, s{S_W}, 10
    s_add_u32 s{S_A}, s{S_A}, {LQF}
    v_add_u32 v4, s{S_A}, v{V_L16}
    ds_read_b128 {vr(Q, 4)}, v4
    v_and_b32 v4, 15, v0
    v_lshrrev_b32 v5, 5, v0
    v_lshl_add_u32 v4, v5, 4, v4
    v_lshlrev_b32 v4, 4, v4
    v_mov_b32 v{M}, 0xff800000""")
    for i in range(16):
        g(f"v_mov_b32 v{T + i}, 0")
    for i in range(8):
        g(f"v_mov_b32 v{V + i}, 0x3f803f80")
    g(f"""s_mov_b32 s{S_A}, {KVOFF}
    s_waitcnt vmcnt(0) lgkmcnt(0)
    {l1}:
    buffer_load_dwordx4 {vr(K, 4)}, v{V_L16}, {sr(R_WS)}, s{S_A} offen sc1
    s_waitcnt vmcnt(0)
    {mfma32(S, K, Q, "0")}
    s_nop 15""")
    for i in range(0, 16, 2):
        g(f"v_max3_f32 v{M}, v{M}, v{S + i}, v{S + i + 1}")
    g(f"""s_add_u32 s{S_A}, s{S_A}, 2048
    s_cmp_lt_u32 s{S_A}, {KVOFF + 64 * 2048}
    s_cbranch_scc1 {l1}
    v_mov_b32 v{M + 1}, v{M}
    s_nop 1
    v_permlane32_swap_b32 v{M}, v{M + 1}
    s_nop 1
    v_max_f32 v{M}, v{M}, v{M + 1}
    s_mov_b32 s{S_A}, {KVOFF}
    {l2}:
    buffer_load_dwordx4 {vr(K, 4)}, v{V_L16}, {sr(R_WS)}, s{S_A} offen sc1
    s_mov_b64 exec, {sr(S_MLO, 2)}
    buffer_load_dwordx4 {vr(V, 4)}, v4, {sr(R_WS)}, s{S_A} offen offset:1024 sc1
    buffer_load_dwordx4 {vr(V + 4, 4)}, v4, {sr(R_WS)}, s{S_A} offen offset:1536 sc1
    s_mov_b64 exec, -1
    s_waitcnt vmcnt(0)
    {mfma32(S, K, Q, "0")}
    s_nop 15""")
    for i in range(16):
        g(f"v_sub_f32 v{S + i}, v{S + i}, v{M}")
    for i in range(16):
        g(f"v_exp_f32 v{S + i}, v{S + i}")
    g(f"""s_nop 1
    {smf(T, V, S)}
    {smf(T, V + 4, S + 8)}
    s_nop 15
    s_add_u32 s{S_A}, s{S_A}, 2048
    s_cmp_lt_u32 s{S_A}, {KVOFF + 64 * 2048}
    s_cbranch_scc1 {l2}
    s_branch L_norm""")


def g_tail(g):
    o = g.o
    OF, B0, WO = 48, 16, 128
    l, d = g.lab("op"), g.lab("od")
    g(f"""s_lshl_b32 s{S_A}, s{S_RB}, 16
    s_lshl_b32 s{S_B}, s{S_LO}, 15
    s_add_u32 s{S_A}, s{S_A}, s{S_B}
    s_lshl_b32 s{S_B}, s{S_KH}, 14
    s_add_u32 s{S_A}, s{S_A}, s{S_B}
    s_add_u32 s{S_A}, s{S_A}, {OOFF}
    s_add_u32 s{S_B}, s{S_A}, 4096
    s_add_u32 s{S_C}, s{S_A}, 8192
    s_add_u32 s{S_D}, s{S_A}, 12288
    s_xor_b32 s{S_E}, s{S_IDX}, 2
    s_mul_i32 s{S_PRING}, s{S_E}, 12288
    s_add_u32 s{S_PRING}, s{S_PRING}, {LGR}
    v_add_u32 v4, s{S_RING}, v{V_L16}
    v_add_u32 v5, s{S_PRING}, v{V_L16}
    s_mov_b32 s{S_SPIN}, {SPIN}
    s_waitcnt vmcnt(0)
    {l}:""")
    for i in range(16):
        g(f"buffer_load_dwordx4 {vr(OF + 4 * i, 4)}, v{V_L16}, {sr(R_WS)}, s{S_A + (i >> 2)} offen offset:{1024 * (i & 3)} sc1")
    g(f"s_waitcnt vmcnt(13)\nv_max3_u32 v6, v{OF}, v{OF + 4}, v{OF + 8}")
    for i in range(3, 15, 2):
        g(f"s_waitcnt vmcnt({14 - i})\nv_max3_u32 v6, v6, v{OF + 4 * i}, v{OF + 4 * i + 4}")
    g(f"""s_waitcnt vmcnt(0)
    v_max_u32 v6, v6, v{OF + 60}
    v_cmp_eq_u32 vcc, -1, v6
    s_cmp_eq_u64 vcc, 0
    s_cbranch_scc1 {d}
    s_sub_u32 s{S_SPIN}, s{S_SPIN}, 1
    s_cmp_lg_u32 s{S_SPIN}, 0
    s_cbranch_scc1 {l}
    {d}:""")
    g.stamp(10)
    for s in range(16):
        g(mfma32(B0 + 16, WO + 8 * s + 4, OF + 4 * s))
    for s in range(16):
        g(mfma32(B0, WO + 8 * s, OF + 4 * s))
        if s >= 12:
            g(f"ds_write_b128 v4, {vr(B0 + 16 + 4 * (s - 12), 4)} offset:{1024 * (s - 12)}")
    g("s_waitcnt lgkmcnt(0)\ns_barrier")
    for i in range(4):
        g.lds(f"ds_read_b128 {vr(OF + 4 * i, 4)}, v5 offset:{1024 * i}", f"e{i}")
    g("s_nop 7")
    for i in range(4):
        g.wlg(f"e{i}")
        for j in range(0, 4, 2):
            g(f"v_pk_add_f32 {vr(B0 + 4 * i + j, 2)}, {vr(B0 + 4 * i + j, 2)}, {vr(OF + 4 * i + j, 2)}")
        for j in range(2):
            g(f"v_cvt_pk_bf16_f32 v{B0 + 16 + 2 * i + j}, v{B0 + 4 * i + 2 * j}, v{B0 + 4 * i + 2 * j + 1}")
        if i & 1:
            b = B0 + 16 + 2 * (i - 1)
            g(f"""s_nop 1
            v_permlane32_swap_b32 v{b}, v{b + 2}
            v_permlane32_swap_b32 v{b + 1}, v{b + 3}
            buffer_store_dwordx4 {vr(b, 4)}, v123, {sr(R_OUT)}, s{S_K2} offen offset:{16 * (i - 1)}""")


def dump_stamps(g):
    if not g.o.prof:
        return
    g("s_waitcnt vmcnt(0)")
    g.stamp(11)
    if g.o.pad:
        role, i = g.o.pad[0], int(g.o.pad[1:])
        l, sk = g.lab("pad"), g.lab("padr")
        g(f"""s_waitcnt lgkmcnt(0)
        s_add_u32 s{S_A}, s{S_ST}, 6000
        s_cmp_{'lt' if role == 'A' else 'ge'}_u32 s{S_W}, 4
        s_cbranch_scc1 {sk}
        s_add_u32 s{S_A}, s{S_ST + 2 * i}, 6000
        {sk}:
        s_mov_b32 s{S_SPIN}, {SPIN}
        {l}:
        s_sleep 1
        s_memrealtime s[98:99]
        s_waitcnt lgkmcnt(0)
        s_sub_u32 s{S_B}, s98, s{S_A}
        s_cmp_ge_i32 s{S_B}, 0
        s_cbranch_scc1 L_end
        s_sub_u32 s{S_SPIN}, s{S_SPIN}, 1
        s_cmp_lg_u32 s{S_SPIN}, 0
        s_cbranch_scc1 {l}
        s_branch L_end""")
        return
    g(f"""s_waitcnt lgkmcnt(0)
    s_lshl_b32 s{S_A}, s2, 3
    s_add_u32 s{S_A}, s{S_A}, s{S_W}
    s_lshl_b32 s{S_A}, s{S_A}, 6
    s_add_u32 s{S_A}, s{S_A}, {STOFF}""")
    for i in range(12):
        g(f"v_mov_b32 v{4 + i}, s{S_ST + 2 * i}")
    g("s_mov_b64 exec, 1")
    for i in range(3):
        g(f"buffer_store_dwordx4 {vr(4 + 4 * i, 4)}, off, {sr(R_WS)}, s{S_A} offset:{16 * i}")


def build(o):
    g = Gen(o)
    prologue(g)
    vm0 = list(g.vm)
    g(f"s_cmp_ge_u32 s{S_W}, 4\ns_cbranch_scc1 L_awave")
    g_wave(g)
    g("s_branch L_fin\nL_awave:")
    g.vm, g.lg = list(vm0), []
    a_wave(g)
    g("L_fin:")
    g.vm, g.lg = [], []
    finalize(g)
    g(f"s_cmp_ge_u32 s{S_W}, 4\ns_cbranch_scc1 L_done")
    g_tail(g)
    g("L_done:")
    dump_stamps(g)
    g("L_end:\ns_endpgm")
    slow_path(g)
    head = open("cdna_kernels/" + NAME + ".s.ref").read().split("; Override launch")[0]
    out = head + f"; @launch grid=(256,1,1) block=(512,1,1) lds={LDS_BYTES}\n"
    out += f""".amdgcn_target "amdgcn-amd-amdhsa--gfx950"
.text
.globl {NAME}_kernel
.p2align 8
.type {NAME}_kernel,@function
{NAME}_kernel:
"""
    out += "\n".join(g.L) + "\n"
    out += f""".section .rodata,"a"
.p2align 6
.amdhsa_kernel {NAME}_kernel
  .amdhsa_next_free_vgpr 256
  .amdhsa_next_free_sgpr 102
  .amdhsa_accum_offset 256
  .amdhsa_group_segment_fixed_size 0
  .amdhsa_kernarg_size 88
  .amdhsa_user_sgpr_count 2
  .amdhsa_user_sgpr_kernarg_segment_ptr 1
  .amdhsa_system_sgpr_workgroup_id_x 1
.end_amdhsa_kernel
"""
    return out


def parse(argv):
    p = argparse.ArgumentParser()
    p.add_argument("-o", default="cdna_kernels/" + NAME + ".s")
    p.add_argument("--prof", type=int, default=0)
    p.add_argument("--lr", type=int, default=2)
    p.add_argument("--rot", type=int, default=1)
    p.add_argument("--npre", type=int, default=0)
    p.add_argument("--kvsleep", type=int, default=2)
    p.add_argument("--hsleep", type=int, default=8)
    p.add_argument("--forceslow", type=int, default=0)
    p.add_argument("--gskip", type=int, default=0)
    p.add_argument("--pad", default="")
    return p.parse_args(argv)


if __name__ == "__main__":
    o = parse(sys.argv[1:])
    open(o.o, "w").write(build(o))
```
